```python
import torch

def _softmax(x, axis=-1):
    return torch.softmax(x, dim=axis)
def _gelu(x):
    return torch.nn.functional.gelu(x, approximate="tanh")
def _silu(x):
    return torch.nn.functional.silu(x)
def _sigmoid(x):
    return torch.sigmoid(x)
def _layernorm(x, axis=-1, eps=1e-5):
    m = x.mean(dim=axis, keepdim=True)
    v = x.var(dim=axis, keepdim=True, unbiased=False)
    return (x - m) / torch.sqrt(v + eps)
def _scatter_add(tgt, idx, src, axis=0):
    return tgt.clone().index_add_(axis, idx, src)
def _segment_sum(src, seg, n):
    out = torch.zeros((n,) + src.shape[1:], dtype=src.dtype)
    return out.index_add_(0, seg, src)
def _pad(x, pw):
    flat = tuple(v for pair in reversed(pw) for v in pair)
    return torch.nn.functional.pad(x, flat)

kernel_name = 'parallel_sum__ssm_conv_s5__glu_gated_bilinear__prompt'

def setup_inputs():

    _w = (lambda a: (lambda t: t.to(torch.bfloat16) if t.is_floating_point() else t)(torch.as_tensor(a)))
    def _A_setup():
        B, S, D = 1, 2048, 576
        P = D
        Lambda_re = -0.5 * (lambda _x: torch.exp(torch.as_tensor(_x)))((lambda *s: torch.randn(*s, dtype=torch.bfloat16) * 0.2)(P))
        Lambda_im = (lambda *s: torch.randn(*s, dtype=torch.bfloat16) * 0.8)(P) * 1.0
        B_re = (lambda *s: torch.randn(*s, dtype=torch.bfloat16) * 0.2)(P, D) * (D ** -0.5)
        B_im = (lambda *s: torch.randn(*s, dtype=torch.bfloat16) * 0.2)(P, D) * (D ** -0.5)
        C_re = (lambda *s: torch.randn(*s, dtype=torch.bfloat16) * 0.2)(D, P) * (P ** -0.5)
        C_im = (lambda *s: torch.randn(*s, dtype=torch.bfloat16) * 0.2)(D, P) * (P ** -0.5)
        log_dt = (lambda *s: torch.randn(*s, dtype=torch.bfloat16) * 0.2)(P) * 0.3 - 2.0
        Dskip = (lambda *s: torch.randn(*s, dtype=torch.bfloat16) * 0.05)(D)
        return {
            "x": _w((lambda *s: torch.randn(*s, dtype=torch.bfloat16) * 0.05)(B, S, D)),
            "Lambda_re": _w(Lambda_re),
            "Lambda_im": _w(Lambda_im),
            "B_re": _w(B_re),
            "B_im": _w(B_im),
            "C_re": _w(C_re),
            "C_im": _w(C_im),
            "log_dt": _w(log_dt),
            "Dskip": _w(Dskip),
        }
    _A_in = _A_setup()

    def _B_setup():
        B, S, D, F = 1, 2048, 576, 4608
        return {
            "x": _w((lambda *s: torch.randn(*s, dtype=torch.bfloat16) * 0.05)(B, S, D)),
            "w_gate": _w((lambda *s: torch.randn(*s, dtype=torch.bfloat16) * 0.4)(D, F) * (D ** -0.5)),
            "w_up": _w((lambda *s: torch.randn(*s, dtype=torch.bfloat16) * 0.4)(D, F) * (D ** -0.5)),
            "w_down": _w((lambda *s: torch.randn(*s, dtype=torch.bfloat16) * 0.4)(F, D) * (F ** -0.5)),
        }
    _B_in = _B_setup()

    return {
        "A_x": _A_in["x"],
        "A_Lambda_re": _A_in["Lambda_re"],
        "A_Lambda_im": _A_in["Lambda_im"],
        "A_B_re": _A_in["B_re"],
        "A_B_im": _A_in["B_im"],
        "A_C_re": _A_in["C_re"],
        "A_C_im": _A_in["C_im"],
        "A_log_dt": _A_in["log_dt"],
        "A_Dskip": _A_in["Dskip"],
        "B_x": _B_in["x"],
        "B_w_gate": _B_in["w_gate"],
        "B_w_up": _B_in["w_up"],
        "B_w_down": _B_in["w_down"],
    }

def reference(A_x, A_Lambda_re, A_Lambda_im, A_B_re, A_B_im, A_C_re, A_C_im, A_log_dt, A_Dskip, B_x, B_w_gate, B_w_up, B_w_down):
    def _A_ref(x, Lambda_re, Lambda_im, B_re, B_im, C_re, C_im, log_dt, Dskip):
        Bsz, L, H = x.shape
        Lam = Lambda_re + 1j * Lambda_im
        Bmat = B_re + 1j * B_im
        Cmat = C_re + 1j * C_im
        dt = torch.exp(log_dt)
        Lam_bar = torch.exp(dt * Lam)
        B_bar = ((Lam_bar - 1.0) / Lam)[:, None] * Bmat
        Bu = torch.einsum("bld,pd->blp", x + 0j, B_bar)
        h = torch.zeros_like(Bu[:, 0, :])
        hs = []
        for t in range(L):
            h = Lam_bar[None, :] * h + Bu[:, t, :]
            hs.append(h)
        hseq = torch.stack(hs, 1)
        y = 2.0 * torch.einsum("blp,dp->bld", hseq, Cmat).real + x * Dskip[None, None, :]
        return y

    def _B_ref(x, w_gate, w_up, w_down):
        g = torch.einsum("bsd,df->bsf", x, w_gate)
        u = torch.einsum("bsd,df->bsf", x, w_up)
        h = g * u
        return torch.einsum("bsf,fd->bsd", h, w_down)

    x = A_x
    xn = _layernorm(x, axis=-1)
    return x + _A_ref(xn, A_Lambda_re, A_Lambda_im, A_B_re, A_B_im, A_C_re, A_C_im, A_log_dt, A_Dskip) + _B_ref(xn, B_w_gate, B_w_up, B_w_down)
```

```python
import re
TRANS = ('v_exp_f32','v_log_f32','v_rcp_f32','v_rsq_f32','v_sqrt_f32','v_sin_f32','v_cos_f32','v_rcp_iflag_f32')
REG = re.compile(r'^(-|\|)?(abs\()?([vas])(\d+)\)?\|?$')
RNG = re.compile(r'^(-)?([vas])\[(\d+):(\d+)\]$')
SPECIAL = {'vcc': [('s',106),('s',107)], 'vcc_lo': [('s',106)], 'vcc_hi': [('s',107)], 'exec': [('s',126),('s',127)],
           'exec_lo': [('s',126)], 'exec_hi': [('s',127)], 'm0': [('s',124)]}
VCC = SPECIAL['vcc']; EXEC = SPECIAL['exec']; M0 = ('s',124)

def regs(tok):
    tok = tok.strip()
    if tok in SPECIAL: return list(SPECIAL[tok])
    m = REG.match(tok)
    if m: return [(m.group(3), int(m.group(4)))]
    m = RNG.match(tok)
    if m: return [(m.group(2), i) for i in range(int(m.group(3)), int(m.group(4)) + 1)]
    return []

class I:
    __slots__ = ('text','op','ops','mods','cls','rd','wr','label','target','ws','passes','srcc','srcab','dpp','trans','storedata','uncond','dl','sdwa','lanesel','constrd')
    def __init__(s, text):
        s.text = text; s.label = None; s.target = None; s.rd = set(); s.wr = set(); s.cls = 'other'; s.ws = 1
        s.passes = 0; s.srcc = []; s.srcab = set(); s.dpp = False; s.trans = False; s.storedata = set(); s.uncond = False
        s.dl = False; s.sdwa = False; s.lanesel = set(); s.constrd = set(); s.op = ''
        t = text.split(';')[0].strip()
        if not t or t.startswith('.') and not t.endswith(':'):
            s.cls = 'dir'; s.ws = 0; return
        if t.endswith(':'):
            s.cls = 'label'; s.label = t[:-1]; s.ws = 0; return
        sp = t.split(None, 1)
        op = sp[0]; rest = sp[1] if len(sp) > 1 else ''
        toks = []; depth = 0; cur = ''
        for ch in rest:
            if ch in '[(': depth += 1
            if ch in '])': depth -= 1
            if ch == ',' and depth == 0: toks.append(cur.strip()); cur = ''
            else: cur += ch
        if cur.strip(): toks.append(cur.strip())
        mods = ''
        if toks:
            last = toks[-1].split(None, 1)
            toks[-1] = last[0]
            if len(last) > 1: mods = last[1]
        base = re.sub(r'_(e32|e64|dpp|sdwa)$', '', op)
        s.op = base; s.ops = toks; s.mods = mods
        R = [regs(x) for x in toks]
        flat = lambda L: set(r for x in L for r in x)
        if op.startswith('v_mfma'):
            s.cls = 'mfma'
            s.passes = 8 if '32x32x16' in op else 4 if '16x16x32' in op else None
            assert s.passes, op
            s.wr = set(R[0]); s.srcab = flat(R[1:3]); s.srcc = R[3]; s.rd = s.srcab | set(R[3])
        elif op.startswith('v_'):
            s.cls = 'valu'
            s.dpp = op.endswith('_dpp'); s.sdwa = op.endswith('_sdwa') or 'op_sel' in mods and not base.startswith('v_pk_')
            s.trans = base in TRANS; s.dl = base.startswith('v_dot')
            if base.startswith('v_cmp'):
                s.wr = set(R[0]); s.rd = flat(R[1:])
                assert not base.startswith('v_cmpx')
            elif base in ('v_readfirstlane_b32',):
                s.wr = set(R[0]); s.rd = flat(R[1:])
            elif base == 'v_readlane_b32':
                s.wr = set(R[0]); s.rd = flat(R[1:]); s.lanesel = set(R[2])
            elif base == 'v_writelane_b32':
                s.wr = set(R[0]); s.rd = flat(R); s.lanesel = set(R[2])
            elif base.startswith('v_permlane') or base == 'v_swap_b32':
                s.wr = flat(R); s.rd = flat(R)
            elif base in ('v_add_co_u32','v_sub_co_u32','v_subrev_co_u32','v_addc_co_u32','v_subb_co_u32','v_mad_u64_u32','v_div_scale_f32'):
                s.wr = set(R[0]) | set(R[1]); s.rd = flat(R[2:])
            elif base == 'v_nop':
                pass
            else:
                s.wr = set(R[0]); s.rd = flat(R[1:])
                if base in ('v_fmac_f32','v_dot2c_f32_bf16','v_pk_fmac_f16','v_mac_f32') or s.dpp or op.endswith('_sdwa'):
                    s.rd |= set(R[0])
                if base == 'v_div_fmas_f32': s.rd |= set(VCC)
            s.constrd = set(r for r in s.rd if r[0] == 's')
        elif op.startswith('buffer_') or op.startswith('global_'):
            s.cls = 'vmem'
            if op in ('buffer_wbl2','buffer_inv'):
                pass
            elif 'lds' in mods.split() or '_lds_' in op:
                s.rd = flat(R) | {M0}; s.dl = True
            elif '_store_' in op:
                s.rd = flat(R)
                d = R[0] if op.startswith('buffer_') else R[1]
                if len(d) >= 3: s.storedata = set(d)
            elif '_atomic_' in op:
                s.rd = flat(R)
                if 'sc0' in mods.split(): s.wr = set(R[0])
            else:
                s.wr = set(R[0]); s.rd = flat(R[1:])
                if 'd16' in op: s.rd |= set(R[0])
        elif op.startswith('ds_'):
            s.cls = 'ds'
            if op.startswith('ds_write') : s.rd = flat(R)
            elif op.startswith('ds_add') and 'rtn' not in op: s.rd = flat(R)
            else: s.wr = set(R[0]); s.rd = flat(R[1:])
        elif op.startswith('s_'):
            s.cls = 'salu'
            if op == 's_nop': s.ws = int(toks[0], 0) + 1
            elif op.startswith('s_cbranch') or op == 's_branch':
                s.target = toks[0]; s.uncond = op == 's_branch'
            elif op == 's_endpgm': s.uncond = True
            elif op.startswith('s_cmp') or op in ('s_waitcnt','s_barrier','s_sleep','s_setprio','s_bitcmp1_b32','s_bitcmp0_b32'):
                s.rd = flat(R)
            elif op.startswith('s_load') or op.startswith('s_mem') or op.startswith('s_atomic'):
                s.cls = 'smem'; s.wr = set(R[0]); s.rd = flat(R[1:])
            else:
                s.wr = set(R[0]); s.rd = flat(R[1:])
                if 'saveexec' in op: s.wr |= set(EXEC)
        else:
            raise ValueError('unknown instr: ' + text)

def need(p, c):
    n = 0
    pv = p.cls == 'valu'; cv = c.cls == 'valu'
    vec = lambda S: set(r for r in S if r[0] != 's')
    sg = lambda S: set(r for r in S if r[0] == 's')
    if pv:
        w = p.wr
        if c.cls == 'mfma':
            if vec(w) & c.rd: n = max(n, 3 if p.dl else 2)
            if set(EXEC) & w: n = max(n, 4)
        if cv:
            if c.dpp and vec(w) & c.rd: n = max(n, 2)
            if c.dpp and set(EXEC) & w: n = max(n, 5)
            if p.trans and not c.trans and (w & c.rd): n = max(n, 1)
            if sg(w) & c.constrd: n = max(n, 2)
            if sg(w) & c.lanesel: n = max(n, 4)
            if c.op in ('v_readlane_b32','v_readfirstlane_b32') and vec(w) & c.rd: n = max(n, 1)
            if c.op.startswith('v_permlane') and vec(w) & c.rd: n = max(n, 2)
            if p.sdwa and (w & (c.rd | c.wr)): n = max(n, 1)
            if c.op == 'v_div_fmas_f32' and set(VCC) & w: n = max(n, 4)
            if p.dl and (w & (c.rd | c.wr)):
                same_c = (c.op == p.op) and not (w & set(sum([regs(x) for x in c.ops[1:3]], [])))
                if not same_c: n = max(n, 3)
        if p.dl and c.cls in ('vmem','ds') and (w & c.rd): n = max(n, 3)
        if c.cls == 'vmem' and sg(w) & c.rd: n = max(n, 5)
        if c.cls in ('salu','smem') and sg(w) & c.rd: n = max(n, 1)
    if p.cls == 'mfma':
        P = p.passes
        if c.cls == 'mfma':
            if p.wr & set(c.srcc):
                if not (set(c.srcc) == p.wr and c.passes == P): n = max(n, P + 2)
            if p.wr & c.srcab: n = max(n, P + 4)
        elif cv:
            if p.wr & (c.rd | c.wr): n = max(n, P + 4)
            if set(p.srcc) & c.wr: n = max(n, P - 1)
        elif c.cls in ('vmem','ds'):
            if p.wr & (c.rd | c.wr): n = max(n, P + 4)
    if p.cls == 'salu' and M0 in p.wr and c.cls == 'vmem' and c.dl: n = max(n, 1)
    if p.cls == 'vmem' and p.storedata & c.wr:
        n = max(n, 2 if cv or c.cls == 'mfma' else 1)
    return n

MAXW = 12
def fix(text, verbose=False):
    old = [I(l) for l in text.split('\n')]
    src_old = {}
    for i, x in enumerate(old):
        if x.target is not None: src_old.setdefault(x.target, []).append(i)
    out = []; newidx = {}
    inserted = 0
    def worst(c):
        best = 0; bestp = None
        stack = [(out, len(out) - 1, 0)]
        seen = {}
        while stack:
            L, i, d = stack.pop()
            while i >= 0 and d < MAXW:
                key = (L is out, i)
                if seen.get(key, 99) <= d: break
                seen[key] = d
                p = L[i]
                if p.cls == 'label':
                    for j in src_old.get(p.label, []):
                        if j in newidx: stack.append((out, newidx[j], d))
                        else: stack.append((old, j, d))
                    k = i - 1
                    while k >= 0 and L[k].cls == 'dir': k -= 1
                    if k >= 0 and L[k].uncond: break
                    i -= 1; continue
                if p.cls == 'dir': i -= 1; continue
                nd = need(p, c)
                if nd - d > best: best = nd - d; bestp = p
                d += p.ws
                i -= 1
        return best, bestp
    for i, x in enumerate(old):
        if x.cls not in ('label', 'dir'):
            w, p = worst(x)
            if w > 0:
                if verbose: print('nop', w, 'before', x.text.strip(), '  <=', p.text.strip())
                out.append(I('    s_nop %d' % (w - 1))); inserted += 1
        newidx[i] = len(out)
        out.append(x)
    return '\n'.join(x.text for x in out), inserted
```

```python
import sys, os
sys.path.insert(0, os.path.dirname(os.path.abspath(__file__)))
import hz

NAME = 'parallel_sum__ssm_conv_s5__glu_gated_bilinear__prompt'
WS_XN = 0x0000000;  SZ_XN = 2048 * 576 * 2
WS_H  = 0x0300000;  SZ_H = 64 * 360 * 1024
WS_CT = 0x1A00000;  SZ_CT = 1152 * 1152
WS_U  = 0x1C00000;  SZ_U = 2048 * 1152 * 4
WS_SQ = 0x2600000;  SZ_SQ = 32 * 72 * 256
WS_E  = 0x2700000;  SZ_E = 72 * 16 * 64 * 4
WS_P  = 0x2800000;  SZ_P = 4 * 2048 * 576 * 4
DPP8 = 'row_ror:8 row_mask:0xf bank_mask:0xf'

class K:
    def __init__(s, name):
        s.name = name; s.L = []; s.nl = 0
    def __call__(s, t): s.L.append('    ' + t)
    def label(s, l): s.L.append(l + ':')
    def newlabel(s, p='L'):
        s.nl += 1; return '%s_%s%d' % (s.name, p, s.nl)
    def c(s, t): s.L.append('    ; ' + t)
    def text(s): return '\n'.join(s.L)

def vr(b, n=1, k='v'):
    return '%s%d' % (k, b) if n == 1 else '%s[%d:%d]' % (k, b, b + n - 1)
def ar(b, n=1): return vr(b, n, 'a')
def sr(b, n=1): return vr(b, n, 's')

def srd(k, d, base, size, off=0, offs=None):
    if off == 0 and offs is None:
        k('s_mov_b32 s%d, s%d' % (d, base)); k('s_mov_b32 s%d, s%d' % (d + 1, base + 1))
    else:
        if off:
            k('s_add_u32 s%d, s%d, 0x%x' % (d, base, off)); k('s_addc_u32 s%d, s%d, 0' % (d + 1, base + 1))
            if offs is not None:
                k('s_add_u32 s%d, s%d, %s' % (d, d, offs)); k('s_addc_u32 s%d, s%d, 0' % (d + 1, d + 1))
        else:
            k('s_add_u32 s%d, s%d, %s' % (d, base, offs)); k('s_addc_u32 s%d, s%d, 0' % (d + 1, base + 1))
    k('s_mov_b32 s%d, %s' % (d + 2, ('0x%x' % size) if isinstance(size, int) else size))
    k('s_mov_b32 s%d, 0x20000' % (d + 3))

LOG2E = 0x3fb8aa3b
INV2PI = '0.15915494'

def lam_params(k, vre, vim, vdt, t0, outs):
    a, b = outs['a'], outs['b']
    T = lambda i: 'v%d' % (t0 + i)
    k('v_lshlrev_b32 v%d, 16, v%d' % (vre, vre))
    k('v_lshlrev_b32 v%d, 16, v%d' % (vim, vim))
    k('v_lshlrev_b32 v%d, 16, v%d' % (vdt, vdt))
    k('v_mul_f32 v%d, 0x%x, v%d' % (vdt, LOG2E, vdt))
    k('v_exp_f32 v%d, v%d' % (vdt, vdt))
    k('v_cvt_pk_bf16_f32 v%d, v%d, v%d' % (vdt, vdt, vdt))
    k('v_lshlrev_b32 v%d, 16, v%d' % (vdt, vdt))
    k('v_mul_f32 %s, v%d, v%d' % (T(0), vdt, vre))
    k('v_mul_f32 %s, v%d, v%d' % (T(1), vdt, vim))
    k('v_mul_f32 %s, 0x%x, %s' % (T(0), LOG2E, T(0)))
    k('v_exp_f32 %s, %s' % (T(0), T(0)))
    k('v_mul_f32 %s, %s, %s' % (T(1), INV2PI, T(1)))
    k('v_rndne_f32 %s, %s' % (T(2), T(1)))
    k('v_sub_f32 %s, %s, %s' % (T(1), T(1), T(2)))
    k('v_cos_f32 %s, %s' % (T(2), T(1)))
    k('v_sin_f32 %s, %s' % (T(3), T(1)))
    k('v_mul_f32 v%d, %s, %s' % (a, T(0), T(2)))
    k('v_mul_f32 v%d, %s, %s' % (b, T(0), T(3)))
    if 'cr' in outs:
        cr, ci = outs['cr'], outs['ci']
        k('v_add_f32 %s, -1.0, v%d' % (T(0), a))
        k('v_mul_f32 %s, v%d, v%d' % (T(1), vre, vre))
        k('v_fmac_f32 %s, v%d, v%d' % (T(1), vim, vim))
        k('v_rcp_f32 %s, %s' % (T(1), T(1)))
        k('v_mul_f32 %s, %s, v%d' % (T(2), T(0), vre))
        k('v_fmac_f32 %s, v%d, v%d' % (T(2), b, vim))
        k('v_mul_f32 %s, v%d, v%d' % (T(3), b, vre))
        k('v_fma_f32 %s, -%s, v%d, %s' % (T(3), T(0), vim, T(3)))
        k('v_mul_f32 v%d, %s, %s' % (cr, T(2), T(1)))
        k('v_mul_f32 v%d, %s, %s' % (ci, T(3), T(1)))
    k('v_sub_f32 v%d, 0, v%d' % (b, b))

def csq(k, dr, di, sr_, si, t):
    k('v_mul_f32 v%d, v%d, v%d' % (t, si, si))
    k('v_mul_f32 v%d, v%d, v%d' % (di, sr_, si))
    k('v_fma_f32 v%d, v%d, v%d, -v%d' % (dr, sr_, sr_, t))
    k('v_add_f32 v%d, v%d, v%d' % (di, di, di))

def cmul(k, dr, di, ar_, ai, br, bi):
    k('v_mul_f32 v%d, v%d, v%d' % (dr, ar_, br))
    k('v_mul_f32 v%d, v%d, v%d' % (di, ar_, bi))
    k('v_fma_f32 v%d, -v%d, v%d, v%d' % (dr, ai, bi, dr))
    k('v_fmac_f32 v%d, v%d, v%d' % (di, ai, br))

def header(k):
    k.L.append('.p2align 8')
    k.L.append('.type %s,@function' % k.name)
    k.label(k.name)

def desc(name, nv, acc_off, ns=102):
    return '''.p2align 6
.amdhsa_kernel %s
  .amdhsa_next_free_vgpr %d
  .amdhsa_next_free_sgpr %d
  .amdhsa_accum_offset %d
  .amdhsa_group_segment_fixed_size 0
  .amdhsa_kernarg_size 128
  .amdhsa_user_sgpr_count 2
  .amdhsa_user_sgpr_kernarg_segment_ptr 1
  .amdhsa_system_sgpr_workgroup_id_x 1
.end_amdhsa_kernel''' % (name, nv, ns, acc_off)

def gen_k0():
    k = K('k0_kernel'); header(k)
    END = k.newlabel('end')
    k('s_cmp_ge_u32 s2, 256'); k('s_cbranch_scc1 %s' % END)
    k('s_load_dwordx16 s[16:31], s[0:1], 0')
    k('s_load_dwordx2 s[32:33], s[0:1], 120')
    k('v_lshrrev_b32 v1, 6, v0')
    k('v_and_b32 v2, 63, v0')
    k('v_readfirstlane_b32 s4, v1')
    k('v_and_b32 v3, 15, v0')
    k('v_bfe_u32 v4, v0, 4, 2')
    k('s_lshr_b32 s5, s2, 3')
    k('s_and_b32 s6, s2, 7')
    k('v_lshrrev_b32 v5, 2, v3'); k('v_lshlrev_b32 v5, 4, v5')
    k('v_and_b32 v6, 3, v3'); k('v_add_u32 v5, v5, v6')
    k('s_lshl_b32 s7, s4, 2'); k('s_lshl_b32 s8, s5, 6'); k('s_add_u32 s7, s7, s8')
    k('v_add_u32 v5, s7, v5')
    k('v_mul_u32_u24 v5, 1152, v5')
    k('v_lshl_add_u32 v5, v4, 4, v5')
    k('s_mul_i32 s7, s6, 72'); k('s_lshl_b32 s8, s4, 3'); k('s_add_u32 s7, s7, s8')
    k('v_and_b32 v6, 7, v0'); k('v_add_u32 v6, s7, v6')
    k('v_lshlrev_b32 v7, 1, v6')
    k('v_mul_u32_u24 v8, 1152, v6'); k('v_lshl_add_u32 v8, v4, 4, v8')
    k('v_and_b32 v9, 8, v0'); k('v_cmp_ne_u32 s[10:11], 0, v9')
    k('s_waitcnt lgkmcnt(0)')
    srd(k, 36, 16, 2048 * 1152)
    srd(k, 40, 18, 1152); srd(k, 44, 20, 1152); srd(k, 48, 30, 1152)
    k('v_mov_b32 v10, s22'); k('v_mov_b32 v11, s23'); k('v_mov_b32 v12, s24'); k('v_mov_b32 v13, s25')
    k('v_cndmask_b32 v10, v10, v12, s[10:11]'); k('v_cndmask_b32 v11, v11, v13, s[10:11]')
    k('v_add_co_u32 v10, vcc, v10, v8'); k('v_addc_co_u32 v11, vcc, 0, v11, vcc')
    k('v_add_co_u32 v12, vcc, 0x9000, v10'); k('v_addc_co_u32 v13, vcc, 0, v11, vcc')
    k('v_add_co_u32 v14, vcc, 0x9000, v12'); k('v_addc_co_u32 v15, vcc, 0, v13, vcc')
    BA = [10, 12, 14]
    X0 = 40
    F0 = 112
    PR = 16
    SK1 = k.newlabel('sk')
    k('s_cmp_lg_u32 s4, 0'); k('s_cbranch_scc1 %s' % SK1)
    for s in range(18):
        k('global_load_dwordx4 %s, v[14:15], off offset:%d' % (ar(144 + 4 * s, 4), 64 * s))
    k.label(SK1)
    for n in range(3):
        k('buffer_load_ushort v%d, v7, s[40:43], 0 offen offset:%d' % (PR + n, 64 * n))
        k('buffer_load_ushort v%d, v7, s[44:47], 0 offen offset:%d' % (PR + 3 + n, 64 * n))
        k('buffer_load_ushort v%d, v7, s[48:51], 0 offen offset:%d' % (PR + 6 + n, 64 * n))
    for s in range(18):
        k('buffer_load_dwordx4 %s, v5, s[36:39], 0 offen offset:%d' % (vr(X0 + 4 * s, 4), 64 * s))
    for n in range(2):
        for s in range(18):
            k('global_load_dwordx4 %s, v[%d:%d], off offset:%d' % (ar(72 * n + 4 * s, 4), BA[n], BA[n] + 1, 64 * s))
    k('s_waitcnt vmcnt(54)')
    for n in range(3):
        lam_params(k, PR + n, PR + 3 + n, PR + 6 + n, F0, dict(a=25 + n, b=28 + n, cr=31 + n, ci=34 + n))
    for n in range(3):
        csq(k, 16 + n, 19 + n, 25 + n, 28 + n, F0)
        for _ in range(3): csq(k, 16 + n, 19 + n, 16 + n, 19 + n, F0)
    for n in range(3):
        k('v_sub_f32 v%d, 0, v%d' % (F0, 28 + n)); k('v_cndmask_b32 v%d, v%d, v%d, s[10:11]' % (28 + n, F0, 28 + n))
        k('v_sub_f32 v%d, 0, v%d' % (F0, 19 + n)); k('v_cndmask_b32 v%d, v%d, v%d, s[10:11]' % (19 + n, F0, 19 + n))
        k('v_add_f32 v%d, v%d, v%d' % (31 + n, 31 + n, 31 + n))
        k('v_sub_f32 v%d, 0, v%d' % (F0, 31 + n)); k('v_cndmask_b32 v%d, v%d, v%d, s[10:11]' % (31 + n, 31 + n, F0))
        k('v_mul_f32 v%d, -2.0, v%d' % (34 + n, 34 + n))
    k('s_waitcnt vmcnt(36)')
    k('s_mov_b32 s12, 0xffff0000')
    for i in range(72):
        k('v_lshlrev_b32 v%d, 16, v%d' % (F0 + 2 * i, X0 + i))
        k('v_and_b32 v%d, s12, v%d' % (F0 + 2 * i + 1, X0 + i))
    k('v_pk_add_f32 v[22:23], v[%d:%d], v[%d:%d]' % (F0, F0 + 1, F0 + 2, F0 + 3))
    k('v_pk_add_f32 v[38:39], v[%d:%d], v[%d:%d]' % (F0 + 4, F0 + 5, F0 + 6, F0 + 7))
    for i in range(4, 72):
        d = 22 if i % 2 == 0 else 38
        k('v_pk_add_f32 v[%d:%d], v[%d:%d], v[%d:%d]' % (d, d + 1, d, d + 1, F0 + 2 * i, F0 + 2 * i + 1))
    k('v_pk_add_f32 v[22:23], v[22:23], v[38:39]')
    k('v_add_f32 v22, v22, v23')
    def xq_sum(r, t):
        k('v_mov_b32 v%d, v%d' % (t, r)); k('v_permlane16_swap_b32 v%d, v%d' % (r, t)); k('v_add_f32 v%d, v%d, v%d' % (r, r, t))
        k('v_mov_b32 v%d, v%d' % (t, r)); k('v_permlane32_swap_b32 v%d, v%d' % (r, t)); k('v_add_f32 v%d, v%d, v%d' % (r, r, t))
    xq_sum(22, 23)
    k('v_mul_f32 v22, 0x3ae38e39, v22')
    k('v_cvt_pk_bf16_f32 v23, v22, v22'); k('v_lshlrev_b32 v24, 16, v23')
    k('v_sub_f32 v37, v22, v24')
    for i in range(72):
        k('v_pk_add_f32 v[%d:%d], v[%d:%d], v[24:25] op_sel_hi:[1,0] neg_lo:[0,1] neg_hi:[0,1]' % (F0 + 2 * i, F0 + 2 * i + 1, F0 + 2 * i, F0 + 2 * i + 1))
    k('v_pk_mul_f32 v[22:23], v[%d:%d], v[%d:%d]' % (F0, F0 + 1, F0, F0 + 1))
    k('v_pk_mul_f32 v[38:39], v[%d:%d], v[%d:%d]' % (F0 + 2, F0 + 3, F0 + 2, F0 + 3))
    for i in range(2, 72):
        d = 22 if i % 2 == 0 else 38
        k('v_pk_fma_f32 v[%d:%d], v[%d:%d], v[%d:%d], v[%d:%d]' % (d, d + 1, F0 + 2 * i, F0 + 2 * i + 1, F0 + 2 * i, F0 + 2 * i + 1, d, d + 1))
    k('v_pk_add_f32 v[22:23], v[22:23], v[38:39]')
    k('v_add_f32 v22, v22, v23')
    xq_sum(22, 23)
    k('v_mul_f32 v22, 0x3ae38e39, v22')
    k('v_fma_f32 v22, -v37, v37, v22')
    k('v_max_f32 v22, 0, v22')
    k('v_cvt_pk_bf16_f32 v22, v22, v22'); k('v_lshlrev_b32 v22, 16, v22')
    k('v_add_f32 v22, 0x3727c5ac, v22')
    k('v_cvt_pk_bf16_f32 v22, v22, v22'); k('v_lshlrev_b32 v22, 16, v22')
    k('v_sqrt_f32 v22, v22')
    k('v_cvt_pk_bf16_f32 v22, v22, v22'); k('v_lshlrev_b32 v22, 16, v22')
    k('v_rcp_f32 v22, v22')
    for i in range(72):
        k('v_cvt_pk_bf16_f32 v%d, v%d, v%d' % (X0 + i, F0 + 2 * i, F0 + 2 * i + 1))
    for i in range(72):
        k('v_lshlrev_b32 v%d, 16, v%d' % (F0 + 2 * i, X0 + i))
        k('v_and_b32 v%d, s12, v%d' % (F0 + 2 * i + 1, X0 + i))
    for i in range(72):
        k('v_pk_mul_f32 v[%d:%d], v[%d:%d], v[22:23] op_sel_hi:[1,0]' % (F0 + 2 * i, F0 + 2 * i + 1, F0 + 2 * i, F0 + 2 * i + 1))
    k('s_mul_i32 s13, s4, 18432')
    k('v_lshlrev_b32 v37, 4, v2'); k('v_add_u32 v38, s13, v37')
    for s in range(18):
        for j in range(4):
            i = 4 * s + j
            k('v_cvt_pk_bf16_f32 v%d, v%d, v%d' % (X0 + i, F0 + 2 * i, F0 + 2 * i + 1))
        k('ds_write_b128 v38, %s offset:%d' % (vr(X0 + 4 * s, 4), 1024 * s))
    k('s_waitcnt lgkmcnt(0)')
    k('s_barrier')
    srd(k, 52, 32, SZ_XN, WS_XN)
    k('v_and_b32 v40, 31, v2'); k('v_lshrrev_b32 v41, 5, v2')
    k('v_bfe_u32 v42, v40, 2, 2'); k('v_mul_u32_u24 v42, 18432, v42')
    k('v_lshrrev_b32 v43, 4, v40'); k('v_lshlrev_b32 v43, 2, v43'); k('v_and_b32 v44, 3, v40'); k('v_add_u32 v43, v43, v44')
    k('v_lshl_add_u32 v42, v43, 4, v42')
    k('s_mul_i32 s14, s6, 9'); k('s_add_u32 s14, s14, s4')
    k('s_mul_i32 s15, s5, 73728')
    SK2 = k.newlabel('sk')
    for n in range(3):
        if n == 2:
            k('s_cmp_lg_u32 s4, 0'); k('s_cbranch_scc1 %s' % SK2)
        k('s_add_u32 s56, s14, %d' % (4 * n))
        k('s_and_b32 s57, s56, 1'); k('s_lshl_b32 s57, s57, 7')
        k('s_and_b32 s58, s56, -2')
        k('v_add_u32 v45, s58, v41')
        k('v_lshrrev_b32 v46, 2, v45'); k('v_lshlrev_b32 v46, 10, v46')
        k('v_and_b32 v45, 3, v45'); k('v_lshl_add_u32 v46, v45, 8, v46')
        k('v_add3_u32 v46, v46, v42, s57')
        k('ds_read_b128 %s, v46' % vr(48 + 4 * n, 4))
        k('s_lshl_b32 s59, s56, 10'); k('s_add_u32 s59, s59, s15')
        k('s_waitcnt lgkmcnt(0)')
        k('buffer_store_dwordx4 %s, v37, s[52:55], s59 offen' % vr(48 + 4 * n, 4))
    k.label(SK2)
    AC = 64
    AF = 112
    k('v_add_u32 v38, 36864, v37')
    def rdA(s):
        for m in range(4):
            k('ds_read_b128 %s, v%d offset:%d' % (vr(AF + 16 * (s & 1) + 4 * m, 4), 37 if m < 2 else 38, ((m & 1) * 18 + s) * 1024))
    rdA(0)
    k('s_waitcnt vmcnt(0)')
    for s in range(18):
        if s + 1 < 18:
            rdA(s + 1); k('s_waitcnt lgkmcnt(4)')
        else:
            k('s_waitcnt lgkmcnt(0)')
        for n in range(3):
            for m in range(4):
                d = vr(AC + 16 * n + 4 * m, 4)
                k('v_mfma_f32_16x16x32_bf16 %s, %s, %s, %s' % (d, vr(AF + 16 * (s & 1) + 4 * m, 4), ar(72 * n + 4 * s, 4), d if s else '0'))
    U0 = 112
    for n in range(3):
        for j in range(16):
            k('v_mul_f32 v%d, v%d, v%d' % (U0 + 16 * n + j, 31 + n, AC + 16 * n + j))
        for j in range(16):
            k('v_fmac_f32_dpp v%d, v%d, v%d %s' % (U0 + 16 * n + j, AC + 16 * n + j, 34 + n, DPP8))
    srd(k, 52, 32, SZ_U, WS_U)
    k('s_mul_i32 s15, s5, 72'); k('s_add_u32 s15, s15, s14')
    k('s_lshl_b32 s56, s15, 12')
    def storeU(n):
        k('s_add_u32 s57, s56, %d' % (n * 4 * 4096))
        for m in range(4):
            k('buffer_store_dwordx4 %s, v37, s[52:55], s57 offen offset:%d' % (vr(U0 + 16 * n + 4 * m, 4), 1024 * m))
    storeU(0); storeU(1)
    SK3 = k.newlabel('sk')
    k('s_cmp_lg_u32 s4, 0'); k('s_cbranch_scc1 %s' % SK3)
    storeU(2)
    k.label(SK3)
    E = [64, 68]
    for n in range(3): k('v_mov_b32 v%d, v%d' % (E[0] + n, U0 + 16 * n))
    for j in range(1, 16):
        a, b = E[(j - 1) & 1], E[j & 1]
        for n in range(3): k('v_fma_f32 v%d, v%d, v%d, v%d' % (b + n, 25 + n, a + n, U0 + 16 * n + j))
        for n in range(3): k('v_fmac_f32_dpp v%d, v%d, v%d %s' % (b + n, a + n, 28 + n, DPP8))
    ef = E[15 & 1]
    k('s_mul_i32 s13, s4, 768'); k('s_add_u32 s13, s13, 73728')
    k('v_lshlrev_b32 v40, 2, v2'); k('v_add_u32 v41, s13, v40')
    k('v_lshlrev_b32 v42, 2, v3'); k('v_add_u32 v42, s13, v42')
    for n in range(3): k('ds_write_b32 v41, v%d offset:%d' % (ef + n, 256 * n))
    G = 72
    for n in range(3):
        k('ds_read2_b32 %s, v42 offset0:%d offset1:%d' % (vr(G + 4 * n, 2), 64 * n, 64 * n + 16))
        k('ds_read2_b32 %s, v42 offset0:%d offset1:%d' % (vr(G + 4 * n + 2, 2), 64 * n + 32, 64 * n + 48))
    k('v_cmp_eq_u32 s[60:61], 1, v4'); k('v_cmp_eq_u32 s[62:63], 2, v4'); k('v_cmp_eq_u32 s[64:65], 3, v4')
    k('s_waitcnt lgkmcnt(0)')
    for j in range(1, 4):
        for n in range(3): k('v_fmac_f32 v%d, v%d, v%d' % (G + 4 * n + j, 16 + n, G + 4 * n + j - 1))
        for n in range(3): k('v_fmac_f32_dpp v%d, v%d, v%d %s' % (G + 4 * n + j, G + 4 * n + j - 1, 19 + n, DPP8))
    for n in range(3):
        k('v_cndmask_b32 v%d, 0, v%d, s[60:61]' % (84 + n, G + 4 * n))
        k('v_cndmask_b32 v%d, v%d, v%d, s[62:63]' % (84 + n, 84 + n, G + 4 * n + 1))
        k('v_cndmask_b32 v%d, v%d, v%d, s[64:65]' % (84 + n, 84 + n, G + 4 * n + 2))
    srd(k, 52, 32, SZ_SQ, WS_SQ)
    srd(k, 68, 32, SZ_E, WS_E)
    k('s_lshl_b32 s56, s15, 8')
    k('s_lshl_b32 s57, s14, 12'); k('s_lshl_b32 s58, s5, 2'); k('s_add_u32 s57, s57, s58')
    k('v_lshlrev_b32 v43, 8, v3')
    k('v_mov_b32 v44, 0')
    def storeS(n):
        k('buffer_store_dword v%d, v40, s[52:55], s56 offen offset:%d' % (84 + n, 1024 * n))
        k('s_add_u32 s58, s57, %d' % (n * 4 * 4096))
        k('buffer_store_dword v%d, v43, s[68:71], s58 offen offset:128' % (G + 4 * n + 3))
        k('buffer_store_dword v44, v43, s[68:71], s58 offen')
    storeS(0); storeS(1)
    SK4 = k.newlabel('sk')
    k('s_cmp_lg_u32 s4, 0'); k('s_cbranch_scc1 %s' % SK4)
    storeS(2)
    k.label(SK4)
    srd(k, 52, 32, SZ_CT, WS_CT)
    k('s_lshl_b32 s56, s2, 2'); k('s_add_u32 s56, s56, s4')
    LP = k.newlabel('ct')
    k.label(LP)
    k('s_cmp_ge_u32 s56, 648'); k('s_cselect_b32 s57, 1, 0')
    k('s_cselect_b32 s72, s28, s26'); k('s_cselect_b32 s73, s29, s27')
    k('s_mov_b32 s74, %d' % (576 * 1152)); k('s_mov_b32 s75, 0x20000')
    k('s_mul_i32 s58, s57, 648'); k('s_sub_u32 s58, s56, s58')
    k('s_mul_i32 s59, s58, 911'); k('s_lshr_b32 s59, s59, 16')
    k('s_mul_i32 s60, s59, 72'); k('s_sub_u32 s60, s58, s60')
    k('s_lshl_b32 s61, s59, 6')
    k('v_add_u32 v45, s61, v2')
    k('v_mul_u32_u24 v46, 1152, v45')
    k('s_lshl_b32 s62, s60, 4')
    k('buffer_load_dwordx4 v[48:51], v46, s[72:75], s62 offen')
    k('v_lshlrev_b32 v45, 1, v45')
    k('s_lshl_b32 s63, s57, 2'); k('s_add_u32 s63, s63, s62'); k('s_mul_i32 s63, s63, 1152')
    k('s_add_u32 s64, s63, %d' % (8 * 1152))
    k('s_waitcnt vmcnt(0)')
    for j in range(8):
        op = 'buffer_store_short_d16_hi' if j & 1 else 'buffer_store_short'
        k('%s v%d, v45, s[52:55], s%d offen offset:%d' % (op, 48 + (j >> 1), 63 + (j >> 2), (j & 3) * 1152))
    k('s_add_u32 s56, s56, 1024'); k('s_cmp_lt_u32 s56, 1296'); k('s_cbranch_scc1 %s' % LP)
    k.label(END)
    k('s_endpgm')
    return k, desc(k.name, 512, 256), (256, 256, 73728 + 3072)


class Sim:
    def __init__(s, k):
        s.k = k; s.N = {}; s.emit = False; s.reset()
    def reset(s):
        s.q = {'vm': [], 'lg': []}
    def out(s, t):
        if s.emit: s.k(t)
    def op(s, cnt, tag, text):
        s.q[cnt].append(tag); s.out(text)
    def wait(s, site, vm=None, lg=None):
        res = []
        for cnt, tags, name, mx in (('vm', vm, 'vmcnt', 63), ('lg', lg, 'lgkmcnt', 15)):
            if tags is None: continue
            key = (site, cnt)
            if not s.emit:
                q = s.q[cnt]; n = mx
                for t in tags:
                    idx = [i for i, x in enumerate(q) if x == t]
                    if idx: n = min(n, len(q) - 1 - idx[-1])
                    else: assert False, ('tag not issued', t, site)
                s.N[key] = min(s.N.get(key, mx), n)
            else:
                res.append('%s(%d)' % (name, s.N[key]))
        if s.emit and res: s.k('s_waitcnt ' + ' '.join(res))

def interleave(mf, fill):
    for i, m in enumerate(mf):
        m()
        for f in fill.get(i, []): f()

EMU_GU = False
def gen_k1(R=6):
    k = K('k1_kernel'); header(k)
    END = k.newlabel('end')
    SLAB = 37120; UREG = 18432 + 128; SCR = 4 * SLAB
    k('s_cmp_ge_u32 s2, 256'); k('s_cbranch_scc1 %s' % END)
    k('s_load_dwordx4 s[16:19], s[0:1], 80')
    k('s_load_dwordx4 s[20:23], s[0:1], 8')
    k('s_load_dwordx2 s[24:25], s[0:1], 56')
    k('s_load_dwordx2 s[32:33], s[0:1], 120')
    k('v_lshrrev_b32 v1, 6, v0')
    k('v_and_b32 v2, 63, v0')
    k('v_readfirstlane_b32 s4, v1')
    k('v_and_b32 v3, 15, v0')
    k('v_bfe_u32 v4, v0, 4, 2')
    k('s_and_b32 s5, s2, 1')
    k('s_bfe_u32 s6, s2, 0x20001')
    k('s_lshr_b32 s7, s2, 3')
    k('s_and_b32 s8, s7, 3'); k('s_lshl_b32 s9, s5, 2'); k('s_add_u32 s8, s8, s9')
    k('s_lshr_b32 s9, s7, 2')
    k('s_lshl_b32 s10, s6, 3'); k('s_add_u32 s10, s10, s9')
    k('s_and_b32 s11, s7, 15'); k('s_lshl_b32 s12, s5, 4'); k('s_add_u32 s11, s11, s12')
    k('s_lshr_b32 s12, s7, 4'); k('s_lshl_b32 s13, s6, 1'); k('s_add_u32 s12, s12, s13')
    for i in range(9):
        k('v_add_u32 v5, %d, v2' % (64 * i))
        k('v_mul_u32_u24 v6, 3641, v5'); k('v_lshrrev_b32 v6, 16, v6')
        k('v_mul_u32_u24 v7, 18, v6'); k('v_sub_u32 v7, v5, v7')
        k('v_mul_u32_u24 v6, 9216, v6'); k('v_lshl_add_u32 v%d, v7, 4, v6' % (8 + i))
        if i % 3: k('v_subrev_u32 v%d, %d, v%d' % (8 + i, 1024 * (i % 3), 8 + i))
    k('v_lshlrev_b32 v17, 4, v2')
    k('v_and_b32 v5, 1, v4'); k('v_mul_u32_u24 v5, %d, v5' % UREG)
    k('v_lshrrev_b32 v6, 1, v4'); k('v_lshlrev_b32 v6, 3, v6'); k('v_bfe_u32 v7, v0, 2, 2'); k('v_add_u32 v6, v6, v7')
    k('v_mul_u32_u24 v6, 288, v6'); k('v_add_u32 v5, v5, v6')
    k('v_and_b32 v6, 3, v0'); k('v_lshl_add_u32 v18, v6, 3, v5')
    k('v_mov_b32 v19, v18')
    k('s_waitcnt lgkmcnt(0)')
    k('s_cmp_ge_u32 s4, 2'); k('s_cselect_b32 s26, s18, s16'); k('s_cselect_b32 s27, s19, s17')
    k('s_and_b32 s13, s4, 1'); k('s_mul_i32 s14, s13, %d' % (32 * 9216)); k('s_mul_i32 s15, s10, 288'); k('s_add_u32 s14, s14, s15')
    k('s_sub_u32 s15, %d, s14' % (576 * 9216))
    srd(k, 36, 26, 's15', 0, 's14')
    k('s_lshr_b32 s28, s4, 1'); k('s_mul_i32 s28, s28, %d' % UREG); k('s_mul_i32 s13, s13, 9216'); k('s_add_u32 s28, s28, s13')
    k('s_lshl_b32 s13, s8, 2'); k('s_add_u32 s13, s13, s4'); k('s_mul_i32 s13, s13, 73728')
    srd(k, 40, 32, 73728, WS_XN, 's13')
    srd(k, 44, 32, SZ_H, WS_H)
    srd(k, 48, 32, SZ_U, WS_U); srd(k, 52, 32, SZ_SQ, WS_SQ); srd(k, 56, 32, SZ_E, WS_E)
    srd(k, 60, 20, 1152); srd(k, 64, 22, 1152); srd(k, 68, 24, 1152)
    ACCV = 48; NV = 13
    def acc(t, xt):
        i = 2 * t + xt
        return vr(ACCV + 16 * i, 16) if i < NV else ar(16 * (i - NV), 16)
    WF = 80; XF = 152
    S = Sim(k)
    def dma(slab, grp, m0reg, soff):
        S.out('s_add_u32 m0, %s, %d' % (m0reg, grp * 3072))
        for i in range(3 * grp, 3 * grp + 3):
            S.op('vm', ('W', slab), 'buffer_load_dwordx4 v%d, s[36:39], %s offen offset:%d lds' % (8 + i, soff, 1024 * (i % 3)))
    def xload(s, soff):
        for xt in range(2):
            S.op('vm', ('X', s), 'buffer_load_dwordx4 %s, v17, s[40:43], %s offen offset:%d' % (ar(XF + 8 * (s % R) + 4 * xt, 4), soff, 1024 * xt))
    FB = 48
    U = lambda n: FB + 48 * n
    Er = lambda n: FB + 48 * n + 16
    SQr = lambda n: FB + 48 * n + 24
    PRE = lambda n: FB + 48 * n + 25
    PIM = lambda n: FB + 48 * n + 26
    PDT = lambda n: FB + 48 * n + 27
    A_ = lambda n: FB + 48 * n + 28
    B_ = lambda n: FB + 48 * n + 29
    T_ = lambda n, i: FB + 48 * n + 30 + i
    SKa = k.newlabel('sk'); SKb = k.newlabel('sk'); LOOP = k.newlabel('loop'); ENT = k.newlabel('ent')
    def fix_loads(n, cond):
        o = (lambda c, t, x: S.out(x)) if cond else S.op
        S.out('s_add_u32 s77, s74, %d' % (n * 4 * 4096))
        for m in range(4):
            o('vm', ('F', n), 'buffer_load_dwordx4 %s, v17, s[48:51], s77 offen offset:%d' % (vr(U(n) + 4 * m, 4), 1024 * m))
        o('vm', ('F', n), 'buffer_load_dword v%d, v20, s[52:55], s75 offen offset:%d' % (SQr(n), 1024 * n))
        S.out('s_add_u32 s78, s76, %d' % (n * 4 * 4096))
        o('vm', ('F', n), 'buffer_load_dwordx4 %s, v21, s[56:59], s78 offen' % vr(Er(n), 4))
        o('vm', ('F', n), 'buffer_load_dwordx4 %s, v21, s[56:59], s78 offen offset:16' % vr(Er(n) + 4, 4))
        o('vm', ('F', n), 'buffer_load_ushort v%d, v22, s[60:63], 0 offen offset:%d' % (PRE(n), 64 * n))
        o('vm', ('F', n), 'buffer_load_ushort v%d, v22, s[64:67], 0 offen offset:%d' % (PIM(n), 64 * n))
        o('vm', ('F', n), 'buffer_load_ushort v%d, v22, s[68:71], 0 offen offset:%d' % (PDT(n), 64 * n))
    def step(s, first=False):
        j, kk = s >> 2, s & 3
        pos = s % 12
        site = ('first' if first else pos)
        vm = [('X', s)]
        if kk == 3 and j + 1 <= 8: vm.append(('W', j + 1))
        S.wait(site, vm=vm, lg=[('R', s)])
        if kk == 3:
            S.out('s_barrier')
            S.out('s_add_u32 s80, s28, s81')
            S.out('s_add_u32 s81, s81, %d' % SLAB)
            S.out('s_cmp_eq_u32 s81, %d' % (4 * SLAB)); S.out('s_cselect_b32 s81, 0, s81')
            S.out('v_add_u32 v19, s81, v18')
            S.out('s_add_u32 s82, s82, %d' % (64 * 9216))
        buf = s & 1; nb = 1 - buf
        mf = []
        for t in range(9):
            for xt in range(2):
                a = acc(t, xt)
                mf.append(lambda t=t, xt=xt, a=a: S.out('v_mfma_f32_32x32x16_bf16 %s, %s, %s, %s' % (a, ar(WF + 36 * buf + 4 * t, 4), ar(XF + 8 * (s % R) + 4 * xt, 4), '0' if first else a)))
        fill = {}
        roff = ((kk + 1) & 3) * 4608
        g = 0
        for t in range(9):
            for h in range(2):
                fill.setdefault(g, []).append(lambda t=t, h=h: S.op('lg', ('R', s + 1), 'ds_read_b64_tr_b16 %s, v19 offset:%d' % (ar(WF + 36 * nb + 4 * t + 2 * h, 2), roff + 32 * t + 1152 * h)))
                if (2 * t + h) % 4 != 0: g += 1
        def xl():
            xload(s - 1 + R, 's83'); S.out('s_add_u32 s83, s83, 2048')
        fill.setdefault(0, []).insert(0, xl)
        if kk in (3, 0, 1):
            grp = {3: 0, 0: 1, 1: 2}[kk]
            slab = j + 4 if kk == 3 else j + 3
            fill.setdefault(14, []).append(lambda: dma(slab, grp, 's80', 's82'))
        interleave(mf, fill)
    def program():
        S.reset()
        o = S.out
        o('s_mov_b32 s82, 0')
        for g in range(3): dma(0, g, 's28', 's82')
        o('s_mov_b32 s83, 0')
        for s in range(R - 1):
            xload(s, 's83'); o('s_add_u32 s83, s83, 2048')
        o('s_add_u32 s80, s28, %d' % SLAB); o('s_mov_b32 s82, %d' % (64 * 9216))
        for g in range(3): dma(1, g, 's80', 's82')
        o('s_mul_i32 s72, s12, 9'); o('s_add_u32 s72, s72, s4')
        o('s_mul_i32 s73, s11, 72'); o('s_add_u32 s73, s73, s72')
        o('s_lshl_b32 s74, s73, 12'); o('s_lshl_b32 s75, s73, 8')
        o('s_lshl_b32 s76, s72, 12'); o('s_lshl_b32 s77, s11, 2'); o('s_add_u32 s76, s76, s77')
        o('v_lshlrev_b32 v20, 2, v2')
        o('v_lshlrev_b32 v21, 8, v3'); o('v_lshlrev_b32 v5, 5, v4'); o('v_sub_u32 v21, v21, v5'); o('v_add_u32 v21, 96, v21')
        o('s_lshl_b32 s77, s72, 4'); o('v_and_b32 v22, 7, v0'); o('v_lshlrev_b32 v22, 1, v22'); o('v_add_u32 v22, s77, v22')
        o('s_cmp_lg_u32 s4, 0'); o('s_cbranch_scc1 %s' % SKa)
        fix_loads(2, True)
        if S.emit: k.label(SKa)
        fix_loads(0, False); fix_loads(1, False)
        o('s_add_u32 s80, s28, %d' % (2 * SLAB)); o('s_mov_b32 s82, %d' % (2 * 64 * 9216))
        for g in range(3): dma(2, g, 's80', 's82')
        o('s_add_u32 s80, s28, %d' % (3 * SLAB)); o('s_mov_b32 s82, %d' % (3 * 64 * 9216))
        dma(3, 0, 's80', 's82')
        o('s_mov_b32 s81, 0')
        o('v_and_b32 v5, 8, v0'); o('v_cmp_ne_u32 s[84:85], 0, v5')
        o('v_cmp_eq_u32 s[86:87], 1, v4'); o('v_cmp_eq_u32 s[88:89], 2, v4'); o('v_cmp_eq_u32 s[90:91], 3, v4')
        S.wait('fix', vm=[('F', 0), ('F', 1)])
        if S.emit:
            N3 = range(3)
            for n in N3: lam_params(k, PRE(n), PIM(n), PDT(n), T_(n, 0), dict(a=A_(n), b=B_(n)))
            for n in N3: csq(k, T_(n, 0), T_(n, 1), A_(n), B_(n), T_(n, 14))
            for _ in range(3):
                for n in N3: csq(k, T_(n, 0), T_(n, 1), T_(n, 0), T_(n, 1), T_(n, 14))
            for n in N3: csq(k, T_(n, 2), T_(n, 3), T_(n, 0), T_(n, 1), T_(n, 14))
            for n in N3: cmul(k, T_(n, 4), T_(n, 5), T_(n, 0), T_(n, 1), T_(n, 2), T_(n, 3))
            for n in N3: csq(k, T_(n, 6), T_(n, 7), T_(n, 2), T_(n, 3), T_(n, 14))
            for n in N3: csq(k, T_(n, 8), T_(n, 9), T_(n, 6), T_(n, 7), T_(n, 14))
            for _ in range(2):
                for n in N3: csq(k, T_(n, 8), T_(n, 9), T_(n, 8), T_(n, 9), T_(n, 14))
            for n in N3: csq(k, T_(n, 10), T_(n, 11), T_(n, 8), T_(n, 9), T_(n, 14))
            for n in N3: cmul(k, T_(n, 12), T_(n, 13), T_(n, 8), T_(n, 9), T_(n, 10), T_(n, 11))
            for n in N3:
                for b0 in (0, 8):
                    k('v_cndmask_b32 v%d, 1.0, v%d, s[86:87]' % (T_(n, b0), T_(n, b0)))
                    k('v_cndmask_b32 v%d, 0, v%d, s[86:87]' % (T_(n, b0 + 1), T_(n, b0 + 1)))
                    for c in range(2):
                        k('v_cndmask_b32 v%d, v%d, v%d, s[88:89]' % (T_(n, b0 + c), T_(n, b0 + c), T_(n, b0 + 2 + c)))
                        k('v_cndmask_b32 v%d, v%d, v%d, s[90:91]' % (T_(n, b0 + c), T_(n, b0 + c), T_(n, b0 + 4 + c)))
                for r in (B_(n), T_(n, 1), T_(n, 7), T_(n, 9)):
                    k('v_cndmask_b32 v%d, -v%d, v%d, s[84:85]' % (r, r, r))
            for j in range(1, 8):
                for n in N3: k('v_fmac_f32 v%d, v%d, v%d' % (Er(n) + j, T_(n, 6), Er(n) + j - 1))
                for n in N3: k('v_fmac_f32_dpp v%d, v%d, v%d %s' % (Er(n) + j, Er(n) + j - 1, T_(n, 7), DPP8))
            for n in N3: k('v_mul_f32 v%d, v%d, v%d' % (T_(n, 2), T_(n, 8), Er(n) + 7))
            for n in N3: k('v_fmac_f32_dpp v%d, v%d, v%d %s' % (T_(n, 2), Er(n) + 7, T_(n, 9), DPP8))
            for sw in ('v_permlane16_swap_b32', 'v_permlane32_swap_b32'):
                for n in N3: k('v_mov_b32 v%d, v%d' % (T_(n, 3), T_(n, 2)))
                for n in N3: k('%s v%d, v%d' % (sw, T_(n, 2), T_(n, 3)))
                for n in N3: k('v_add_f32 v%d, v%d, v%d' % (T_(n, 2), T_(n, 2), T_(n, 3)))
            for n in N3: k('v_fmac_f32 v%d, v%d, v%d' % (SQr(n), T_(n, 0), T_(n, 2)))
            for n in N3: k('v_fmac_f32_dpp v%d, v%d, v%d %s' % (SQr(n), T_(n, 2), T_(n, 1), DPP8))
            for j in range(16):
                prev = (lambda n: SQr(n)) if j == 0 else (lambda n: U(n) + j - 1)
                for n in N3: k('v_fmac_f32 v%d, v%d, v%d' % (U(n) + j, A_(n), prev(n)))
                for n in N3: k('v_fmac_f32_dpp v%d, v%d, v%d %s' % (U(n) + j, prev(n), B_(n), DPP8))
            for n in N3:
                for j in range(8): k('v_cvt_pk_bf16_f32 v%d, v%d, v%d' % (T_(n, j), U(n) + 2 * j, U(n) + 2 * j + 1))
            k('s_mul_i32 s77, s4, 3072'); k('s_add_u32 s77, s77, %d' % SCR)
            k('v_mul_u32_u24 v5, 192, v3'); k('v_lshl_add_u32 v5, v4, 5, v5'); k('v_add_u32 v5, s77, v5')
            k('v_bfe_u32 v6, v0, 2, 2'); k('v_mul_u32_u24 v6, 192, v6'); k('v_lshl_add_u32 v6, v4, 5, v6')
            k('v_and_b32 v7, 3, v0'); k('v_lshl_add_u32 v6, v7, 3, v6'); k('v_add_u32 v6, s77, v6')
            k('v_lshrrev_b32 v7, 5, v2'); k('v_mul_u32_u24 v7, %d, v7' % (360 * 1024)); k('v_and_b32 v23, 31, v2'); k('v_lshl_add_u32 v7, v23, 4, v7')
            k('s_mul_i32 s77, s11, 720'); k('s_mul_i32 s78, s6, 72'); k('s_add_u32 s77, s77, s78'); k('s_add_u32 s77, s77, s72'); k('s_add_u32 s77, s77, 72')
            k('s_lshl_b32 s77, s77, 10')
        for n in (2, 0, 1):
            cond = n == 2
            if cond: o('s_cmp_lg_u32 s4, 0'); o('s_cbranch_scc1 %s' % SKb)
            o('ds_write_b128 v5, %s' % vr(T_(n, 0), 4)); o('ds_write_b128 v5, %s offset:16' % vr(T_(n, 4), 4))
            for mm in range(4): o('ds_read_b64_tr_b16 %s, v6 offset:%d' % (vr(U(n) + 2 * mm, 2), 768 * mm))
            o('s_add_u32 s78, s77, %d' % (n * 4096))
            o('s_waitcnt lgkmcnt(0)')
            for hh in range(2):
                t = 'buffer_store_dwordx4 %s, v7, s[44:47], s78 offen offset:%d' % (vr(U(n) + 4 * hh, 4), 512 * hh)
                if cond: o(t)
                else: S.op('vm', ('FS', n), t)
            if cond and S.emit: k.label(SKb)
        S.wait('w0', vm=[('W', 0)])
        o('s_barrier')
        for t in range(9):
            for h in range(2):
                S.op('lg', ('R', 0), 'ds_read_b64_tr_b16 %s, v19 offset:%d' % (ar(WF + 4 * t + 2 * h, 2), 32 * t + 1152 * h))
        o('s_mov_b32 s92, 0')
        step(0, first=True)
        o('s_branch %s' % ENT)
        if S.emit:
            k.label(LOOP)
            step(12)
            k.label(ENT)
            for s in range(13, 24): step(s)
            k('s_add_u32 s92, s92, 1'); k('s_cmp_lt_u32 s92, 3'); k('s_cbranch_scc1 %s' % LOOP)
        else:
            for s in range(1, 36): step(s)
    S.emit = False; program()
    S.emit = True; program()
    k('s_lshl_b32 s72, s8, 3'); k('s_lshl_b32 s73, s4, 1'); k('s_add_u32 s72, s72, s73'); k('s_mul_i32 s72, s72, 360')
    k('s_mul_i32 s73, s6, 90'); k('s_add_u32 s72, s72, s73'); k('s_mul_i32 s73, s9, 9'); k('s_add_u32 s72, s72, s73')
    k('s_lshl_b32 s72, s72, 10')
    k('s_mov_b32 s74, 0xffff0000')
    for t in range(9):
        for xt in range(2):
            i = 2 * t + xt
            if i < NV: b = ACCV + 16 * i
            else:
                b = 24 if False else ACCV + 16 * (i - NV)
                for j in range(16): k('v_accvgpr_read_b32 v%d, a%d' % (b + j, 16 * (i - NV) + j))
            if EMU_GU:
                for j in range(0, 16, 2):
                    k('v_cvt_pk_bf16_f32 v24, v%d, v%d' % (b + j, b + j + 1))
                    k('v_lshlrev_b32 v%d, 16, v24' % (b + j)); k('v_and_b32 v%d, s74, v24' % (b + j + 1))
            for j in range(0, 8, 2):
                k('v_pk_mul_f32 v[%d:%d], v[%d:%d], v[%d:%d]' % (b + j, b + j + 1, b + j, b + j + 1, b + j + 8, b + j + 9))
            for j in range(4):
                k('v_cvt_pk_bf16_f32 v%d, v%d, v%d' % (b + 8 + j, b + 2 * j, b + 2 * j + 1))
            k('s_add_u32 s73, s72, %d' % (xt * 360 * 1024 + (t >> 2) * 4096))
            k('buffer_store_dwordx4 %s, v17, s[44:47], s73 offen offset:%d' % (vr(b + 8, 4), 1024 * (t & 3)))
    k.label(END)
    k('s_endpgm')
    return k, desc(k.name, 512, 256), (256, 256, 4 * SLAB + 4 * 3072)

def gen_k2():
    k = K('k2_kernel'); header(k)
    END = k.newlabel('end')
    SLAB = 28672; R = 15
    k('s_cmp_ge_u32 s2, 256'); k('s_cbranch_scc1 %s' % END)
    k('s_load_dwordx2 s[16:17], s[0:1], 96')
    k('s_load_dwordx2 s[32:33], s[0:1], 120')
    k('v_lshrrev_b32 v1, 6, v0')
    k('v_and_b32 v2, 63, v0')
    k('v_readfirstlane_b32 s4, v1')
    k('v_and_b32 v3, 15, v0')
    k('v_bfe_u32 v4, v0, 4, 2')
    k('s_and_b32 s5, s2, 1')
    k('s_bfe_u32 s6, s2, 0x20001')
    k('s_lshr_b32 s7, s2, 3')
    k('s_and_b32 s8, s7, 7'); k('s_lshl_b32 s9, s5, 3'); k('s_add_u32 s8, s8, s9')
    k('s_lshr_b32 s9, s7, 3')
    k('s_mul_i32 s10, s4, 448')
    k('v_add_u32 v15, s10, v2')
    for i in range(7):
        k('v_add_u32 v5, %d, v15' % (64 * i))
        k('v_mul_u32_u24 v6, 3641, v5'); k('v_lshrrev_b32 v6, 16, v6')
        k('v_mul_u32_u24 v7, 18, v6'); k('v_sub_u32 v7, v5, v7')
        k('v_mul_u32_u24 v6, 1152, v6'); k('v_lshl_add_u32 v%d, v7, 4, v6' % (8 + i))
        if i % 4: k('v_subrev_u32 v%d, %d, v%d' % (8 + i, 1024 * (i % 4), 8 + i))
    k('v_cmp_le_u32 vcc, 1728, v5'); k('v_mov_b32 v6, 0x7f000000'); k('v_cndmask_b32 v14, v14, v6, vcc')
    k('v_lshlrev_b32 v16, 9, v4'); k('v_lshl_add_u32 v16, v3, 4, v16')
    k('v_lshrrev_b32 v5, 1, v4'); k('v_lshlrev_b32 v5, 4, v5'); k('v_and_b32 v6, 1, v4'); k('v_lshl_add_u32 v5, v6, 2, v5')
    k('v_bfe_u32 v6, v0, 2, 2'); k('v_add_u32 v5, v5, v6'); k('v_mul_u32_u24 v5, 288, v5')
    k('v_and_b32 v6, 3, v0'); k('v_lshl_add_u32 v17, v6, 3, v5')
    k('v_add_u32 v18, %d, v17' % (2 * SLAB)); k('v_add_u32 v19, %d, v17' % (4 * SLAB))
    k('v_lshlrev_b32 v20, 4, v2')
    k('s_waitcnt lgkmcnt(0)')
    k('s_mul_i32 s10, s6, %d' % (1152 * 1152)); k('s_mul_i32 s11, s9, 288'); k('s_add_u32 s10, s10, s11')
    k('s_add_u32 s20, s16, s10'); k('s_addc_u32 s21, s17, 0'); k('s_sub_u32 s22, %d, s11' % (1152 * 1152))
    k('s_mul_i32 s10, s6, %d' % (288 * 1152)); k('s_add_u32 s10, s10, s11'); k('s_add_u32 s10, s10, 0x%x' % WS_CT)
    k('s_add_u32 s24, s32, s10'); k('s_addc_u32 s25, s33, 0'); k('s_sub_u32 s26, %d, s11' % (288 * 1152))
    k('s_mov_b32 s36, s20'); k('s_mov_b32 s37, s21'); k('s_mov_b32 s38, s22'); k('s_mov_b32 s39, 0x20000')
    k('s_lshl_b32 s10, s8, 2'); k('s_add_u32 s10, s10, s4'); k('s_mul_i32 s12, s10, 360'); k('s_mul_i32 s11, s6, 90'); k('s_add_u32 s12, s12, s11'); k('s_lshl_b32 s12, s12, 10')
    srd(k, 40, 32, 90 * 1024, WS_H, 's12')
    k('s_mul_i32 s28, s4, 7168')
    ACC = 64; WF = 136
    S = Sim(k)
    LOOP = k.newlabel('loop'); ENT = k.newlabel('ent')
    def dma(slab, grp):
        slot = slab % 5
        S.out('s_add_u32 m0, s28, %d' % (slot * SLAB + grp * 4096))
        for i in range(4 * grp, min(7, 4 * grp + 4)):
            S.op('vm', ('W', slab), 'buffer_load_dwordx4 v%d, s[36:39], s82 offen offset:%d lds' % (8 + i, 1024 * (i % 4)))
    def next_slab_srd():
        S.out('s_add_u32 s82, s82, %d' % (96 * 1152))
        S.out('s_add_u32 s84, s84, 1')
        S.out('s_cmp_eq_u32 s84, 12')
        S.out('s_cselect_b32 s36, s24, s36'); S.out('s_cselect_b32 s37, s25, s37'); S.out('s_cselect_b32 s38, s26, s38'); S.out('s_cselect_b32 s82, 0, s82')
    def hload(s):
        for m in range(2):
            S.op('vm', ('H', s), 'buffer_load_dwordx4 %s, v16, s[40:43], s83 offen offset:%d' % (ar(8 * (s % R) + 4 * m, 4), 256 * m))
        S.out('s_add_u32 s83, s83, 2048')
    def rd(s, ct, h):
        j, kk = s // 3, s % 3
        slot = j % 5
        base = 17 + slot // 2
        off = (slot & 1) * SLAB + kk * 32 * 288 + h * 8 * 288 + ct * 32
        S.op('lg', ('R', s, ct), 'ds_read_b64_tr_b16 %s, v%d offset:%d' % (vr(WF + 36 * (s & 1 if False else (s % 15) & 1) + 4 * ct + 2 * h, 2), base, off))
    def wf(s): return WF_BASE[(s % 15) % 3]
    WF_BASE = [136, 172, 208]
    def rd(s, ct, h):
        j, kk = s // 3, s % 3
        slot = j % 5
        base = 17 + slot // 2
        off = (slot & 1) * SLAB + kk * 32 * 288 + h * 8 * 288 + ct * 32
        S.op('lg', ('R', s, ct), 'ds_read_b64_tr_b16 %s, v%d offset:%d' % (vr(wf(s) + 4 * ct + 2 * h, 2), base, off))
    def step(s, first=False):
        j, kk = s // 3, s % 3
        pos = s % 15
        site = 'first' if first else pos
        vm = [('H', s)]
        if kk == 2:
            if j + 1 <= 14: vm.append(('W', j + 1))
            S.wait((site, 'a'), vm=vm, lg=[('R', s, 8)])
            S.out('s_barrier')
        else:
            S.wait((site, 'a'), vm=vm, lg=[('R', s, 2)])
        mf = []
        for ct in range(9):
            for m in range(2):
                a = vr(ACC + 8 * ct + 4 * m, 4)
                mf.append(lambda ct=ct, m=m, a=a: S.out('v_mfma_f32_16x16x32_bf16 %s, %s, %s, %s' % (a, vr(wf(s) + 4 * ct, 4), ar(8 * (s % R) + 4 * m, 4), '0' if first else a)))
        fill = {}
        for ct in range(9):
            fill.setdefault(ct, []).append(lambda ct=ct: rd(s + 1, ct, 0))
            fill.setdefault(ct, []).append(lambda ct=ct: rd(s + 1, ct, 1))
        if kk != 2:
            fill.setdefault(5, []).insert(0, lambda: S.wait((site, 'b'), lg=[('R', s, 8)]))
        fill.setdefault(9, []).append(lambda: hload(s - 1 + R))
        if kk == 2:
            fill.setdefault(11, []).append(next_slab_srd)
            fill.setdefault(12, []).append(lambda: dma(j + 5, 0))
        if kk == 0:
            fill.setdefault(12, []).append(lambda: dma(j + 4, 1))
        interleave(mf, fill)
    def program():
        S.reset(); o = S.out
        o('s_mov_b32 s82, 0'); o('s_mov_b32 s83, 0'); o('s_mov_b32 s84, 0')
        dma(0, 0); dma(0, 1)
        for s in range(3): hload(s)
        for j in range(1, 5):
            next_slab_srd()
            dma(j, 0)
            if j < 4: dma(j, 1)
            for s in range(3 * j, min(3 * j + 3, R - 1)): hload(s)
        S.wait('w0', vm=[('W', 0)])
        o('s_barrier')
        for ct in range(9):
            rd(0, ct, 0); rd(0, ct, 1)
        o('s_mov_b32 s92, 0')
        step(0, first=True)
        o('s_branch %s' % ENT)
        if S.emit:
            k.label(LOOP)
            step(15)
            k.label(ENT)
            for s in range(16, 30): step(s)
            k('s_add_u32 s92, s92, 1'); k('s_cmp_lt_u32 s92, 3'); k('s_cbranch_scc1 %s' % LOOP)
        else:
            for s in range(1, 45): step(s)
    S.emit = False; program()
    S.emit = True; program()
    k('s_lshl_b32 s11, s6, 6'); k('s_add_u32 s11, s11, s10'); k('s_lshl_b32 s11, s11, 2'); k('s_add_u32 s11, s11, s9'); k('s_mul_i32 s11, s11, 18432')
    srd(k, 44, 32, 18432, WS_P, 's11')
    for ct in range(9):
        for m in range(2):
            i = 2 * ct + m
            if i % 4 == 0: k('s_mov_b32 s12, %d' % (i * 1024))
            k('buffer_store_dwordx4 %s, v20, s[44:47], s12 offen offset:%d' % (vr(ACC + 4 * i, 4), 1024 * (i % 4)))
    k.label(END)
    k('s_endpgm')
    return k, desc(k.name, 256 + 120, 256), (256, 256, 5 * SLAB)

def gen_k3():
    k = K('k3_kernel'); header(k)
    END = k.newlabel('end')
    k('s_cmp_ge_u32 s2, 1152'); k('s_cbranch_scc1 %s' % END)
    k('s_load_dwordx2 s[16:17], s[0:1], 0')
    k('s_load_dwordx2 s[18:19], s[0:1], 64')
    k('s_load_dwordx2 s[20:21], s[0:1], 104')
    k('s_load_dwordx2 s[32:33], s[0:1], 120')
    k('v_lshrrev_b32 v1, 6, v0'); k('v_and_b32 v2, 63, v0')
    k('v_readfirstlane_b32 s4, v1')
    k('s_lshl_b32 s5, s2, 2'); k('s_add_u32 s5, s5, s4')
    k('s_mul_i32 s6, s5, 58255'); k('s_lshr_b32 s6, s6, 22')
    k('s_mul_i32 s7, s6, 72'); k('s_sub_u32 s7, s5, s7')
    k('s_lshr_b32 s8, s7, 1'); k('s_and_b32 s9, s7, 1')
    k('v_and_b32 v3, 15, v0'); k('v_bfe_u32 v4, v0, 4, 2')
    k('s_lshl_b32 s10, s6, 5'); k('s_lshl_b32 s11, s9, 4'); k('s_add_u32 s10, s10, s11')
    k('v_add_u32 v5, s10, v3')
    k('s_lshl_b32 s11, s8, 4')
    k('v_lshl_add_u32 v6, v4, 2, s11')
    k('v_mul_u32_u24 v7, 576, v5'); k('v_add_u32 v7, v7, v6')
    k('v_lshlrev_b32 v8, 1, v7'); k('v_lshlrev_b32 v9, 2, v7'); k('v_lshlrev_b32 v10, 1, v6')
    k('v_lshrrev_b32 v11, 6, v5'); k('v_mul_u32_u24 v11, 73728, v11')
    k('v_bfe_u32 v12, v5, 5, 1'); k('v_lshl_add_u32 v11, v12, 10, v11')
    k('v_and_b32 v12, 31, v5'); k('v_lshl_add_u32 v11, v12, 4, v11')
    k('v_lshrrev_b32 v12, 4, v6'); k('v_lshl_add_u32 v11, v12, 11, v11')
    k('v_bfe_u32 v12, v6, 3, 1'); k('v_lshl_add_u32 v11, v12, 9, v11')
    k('v_and_b32 v12, 7, v6'); k('v_lshl_add_u32 v11, v12, 1, v11')
    k('v_lshlrev_b32 v13, 4, v2')
    k('s_lshl_b32 s12, s5, 10')
    k('s_waitcnt lgkmcnt(0)')
    srd(k, 36, 16, 2048 * 1152); srd(k, 40, 18, 1152); srd(k, 44, 20, 2048 * 576 * 4)
    srd(k, 48, 32, SZ_XN, WS_XN); srd(k, 52, 32, SZ_P, WS_P)
    for q in range(4):
        if q: k('s_add_u32 s12, s12, %d' % (2048 * 576 * 4))
        k('buffer_load_dwordx4 %s, v13, s[52:55], s12 offen' % vr(16 + 4 * q, 4))
    k('buffer_load_dwordx2 v[32:33], v8, s[36:39], 0 offen')
    k('buffer_load_dwordx2 v[34:35], v11, s[48:51], 0 offen')
    k('buffer_load_dwordx2 v[36:37], v10, s[40:43], 0 offen')
    k('s_mov_b32 s13, 0xffff0000')
    k('s_waitcnt vmcnt(0)')
    for b, d in ((32, 40), (34, 44), (36, 48)):
        for i in range(2):
            k('v_lshlrev_b32 v%d, 16, v%d' % (d + 2 * i, b + i)); k('v_and_b32 v%d, s13, v%d' % (d + 2 * i + 1, b + i))
    k('v_pk_mul_f32 v[44:45], v[44:45], v[48:49]'); k('v_pk_mul_f32 v[46:47], v[46:47], v[50:51]')
    k('v_cvt_pk_bf16_f32 v34, v44, v45'); k('v_cvt_pk_bf16_f32 v35, v46, v47')
    for i in range(2):
        k('v_lshlrev_b32 v%d, 16, v%d' % (44 + 2 * i, 34 + i)); k('v_and_b32 v%d, s13, v%d' % (44 + 2 * i + 1, 34 + i))
    for h in (0, 2):
        k('v_pk_add_f32 v[%d:%d], v[%d:%d], v[%d:%d]' % (16 + h, 17 + h, 16 + h, 17 + h, 20 + h, 21 + h))
        k('v_pk_add_f32 v[%d:%d], v[%d:%d], v[%d:%d]' % (24 + h, 25 + h, 24 + h, 25 + h, 28 + h, 29 + h))
        k('v_pk_add_f32 v[%d:%d], v[%d:%d], v[%d:%d]' % (40 + h, 41 + h, 40 + h, 41 + h, 44 + h, 45 + h))
        k('v_pk_add_f32 v[%d:%d], v[%d:%d], v[%d:%d]' % (16 + h, 17 + h, 16 + h, 17 + h, 24 + h, 25 + h))
        k('v_pk_add_f32 v[%d:%d], v[%d:%d], v[%d:%d]' % (16 + h, 17 + h, 16 + h, 17 + h, 40 + h, 41 + h))
    k('buffer_store_dwordx4 v[16:19], v9, s[44:47], 0 offen')
    k.label(END)
    k('s_endpgm')
    return k, desc(k.name, 56, 56, 64), (1152, 256, 0)

def build(kernels, path, verbose=False):
    head = open('cdna_kernels/%s.s.ref' % NAME).read().split('\n')
    hdr = [l for l in head if l.startswith(';') and '@launch' not in l and 'Override' not in l and 'grid=ceil' not in l]
    out = hdr[:]
    for k, d, (g, b, lds) in kernels:
        out.append('; @launch kernel=%s grid=(%d,1,1) block=(%d,1,1) lds=%d' % (k.name, g, b, lds))
    out.append('.amdgcn_target "amdgcn-amd-amdhsa--gfx950"')
    out.append('.text')
    seen = set()
    for k, d, _ in kernels:
        if k.name in seen: continue
        seen.add(k.name)
        t, n = hz.fix(k.text(), verbose)
        print(k.name, 'instrs', len(k.L), 'nops inserted', n)
        out.append('.globl %s' % k.name)
        out.append(t)
    out.append('.section .rodata,"a"')
    seen = set()
    for k, d, _ in kernels:
        if k.name in seen: continue
        seen.add(k.name); out.append(d)
    open(path, 'w').write('\n'.join(out) + '\n')

if __name__ == '__main__':
    ks = [gen_k0(), gen_k1(), gen_k2(), gen_k3()]
    build(ks, sys.argv[1] if len(sys.argv) > 1 else 'out.s', verbose='-v' in sys.argv)
```

```python
import sys, os
sys.path.insert(0, os.path.dirname(os.path.abspath(__file__)))
import hz

NAME = 'parallel_sum__ssm_conv_s5__glu_gated_bilinear__prompt'
WS_XN = 0x0000000;  SZ_XN = 2048 * 576 * 2
WS_H  = 0x0300000;  SZ_H = 64 * 360 * 1024
WS_CT = 0x1A00000;  SZ_CT = 1152 * 1152
WS_U  = 0x1C00000;  SZ_U = 2048 * 1152 * 4
WS_SQ = 0x2600000;  SZ_SQ = 32 * 72 * 256
WS_E  = 0x2700000;  SZ_E = 72 * 16 * 64 * 4
WS_P  = 0x2800000;  SZ_P = 4 * 2048 * 576 * 4
DPP8 = 'row_ror:8 row_mask:0xf bank_mask:0xf'

class K:
    def __init__(s, name):
        s.name = name; s.L = []; s.nl = 0
    def __call__(s, t): s.L.append('    ' + t)
    def label(s, l): s.L.append(l + ':')
    def newlabel(s, p='L'):
        s.nl += 1; return '%s_%s%d' % (s.name, p, s.nl)
    def c(s, t): s.L.append('    ; ' + t)
    def text(s): return '\n'.join(s.L)

def vr(b, n=1, k='v'):
    return '%s%d' % (k, b) if n == 1 else '%s[%d:%d]' % (k, b, b + n - 1)
def ar(b, n=1): return vr(b, n, 'a')
def sr(b, n=1): return vr(b, n, 's')

def srd(k, d, base, size, off=0, offs=None):
    if off == 0 and offs is None:
        k('s_mov_b32 s%d, s%d' % (d, base)); k('s_mov_b32 s%d, s%d' % (d + 1, base + 1))
    else:
        if off:
            k('s_add_u32 s%d, s%d, 0x%x' % (d, base, off)); k('s_addc_u32 s%d, s%d, 0' % (d + 1, base + 1))
            if offs is not None:
                k('s_add_u32 s%d, s%d, %s' % (d, d, offs)); k('s_addc_u32 s%d, s%d, 0' % (d + 1, d + 1))
        else:
            k('s_add_u32 s%d, s%d, %s' % (d, base, offs)); k('s_addc_u32 s%d, s%d, 0' % (d + 1, base + 1))
    k('s_mov_b32 s%d, %s' % (d + 2, ('0x%x' % size) if isinstance(size, int) else size))
    k('s_mov_b32 s%d, 0x20000' % (d + 3))

WS_T = 0x4000000
STAMP = False
def stamp(k, idx, real=False, emit=True):
    if not STAMP or not emit: return
    k('%s s[98:99]' % ('s_memrealtime' if real else 's_memtime'))
    k('s_waitcnt lgkmcnt(0)')
    k('v_writelane_b32 v1, s98, %d' % idx)
def stamp_end(k, kid):
    if not STAMP: return
    stamp(k, 14); stamp(k, 15, real=True)
    k('s_lshl_b32 s94, s2, 2'); k('s_add_u32 s94, s94, s4'); k('s_lshl_b32 s94, s94, 6')
    k('s_add_u32 s94, s94, 0x%x' % (WS_T + kid * 0x80000))
    k('s_add_u32 s96, s32, s94'); k('s_addc_u32 s97, s33, 0'); k('s_mov_b32 s98, 64'); k('s_mov_b32 s99, 0x20000')
    k('v_and_b32 v2, 63, v0'); k('v_lshlrev_b32 v0, 2, v2')
    k('buffer_store_dword v1, v0, s[96:99], 0 offen')

LOG2E = 0x3fb8aa3b
INV2PI = '0.15915494'

def lam_params(k, vre, vim, vdt, t0, outs):
    a, b = outs['a'], outs['b']
    T = lambda i: 'v%d' % (t0 + i)
    k('v_lshlrev_b32 v%d, 16, v%d' % (vre, vre))
    k('v_lshlrev_b32 v%d, 16, v%d' % (vim, vim))
    k('v_lshlrev_b32 v%d, 16, v%d' % (vdt, vdt))
    k('v_mul_f32 v%d, 0x%x, v%d' % (vdt, LOG2E, vdt))
    k('v_exp_f32 v%d, v%d' % (vdt, vdt))
    k('v_cvt_pk_bf16_f32 v%d, v%d, v%d' % (vdt, vdt, vdt))
    k('v_lshlrev_b32 v%d, 16, v%d' % (vdt, vdt))
    k('v_mul_f32 %s, v%d, v%d' % (T(0), vdt, vre))
    k('v_mul_f32 %s, v%d, v%d' % (T(1), vdt, vim))
    k('v_mul_f32 %s, 0x%x, %s' % (T(0), LOG2E, T(0)))
    k('v_exp_f32 %s, %s' % (T(0), T(0)))
    k('v_mul_f32 %s, %s, %s' % (T(1), INV2PI, T(1)))
    k('v_rndne_f32 %s, %s' % (T(2), T(1)))
    k('v_sub_f32 %s, %s, %s' % (T(1), T(1), T(2)))
    k('v_cos_f32 %s, %s' % (T(2), T(1)))
    k('v_sin_f32 %s, %s' % (T(3), T(1)))
    k('v_mul_f32 v%d, %s, %s' % (a, T(0), T(2)))
    k('v_mul_f32 v%d, %s, %s' % (b, T(0), T(3)))
    if 'cr' in outs:
        cr, ci = outs['cr'], outs['ci']
        k('v_add_f32 %s, -1.0, v%d' % (T(0), a))
        k('v_mul_f32 %s, v%d, v%d' % (T(1), vre, vre))
        k('v_fmac_f32 %s, v%d, v%d' % (T(1), vim, vim))
        k('v_rcp_f32 %s, %s' % (T(1), T(1)))
        k('v_mul_f32 %s, %s, v%d' % (T(2), T(0), vre))
        k('v_fmac_f32 %s, v%d, v%d' % (T(2), b, vim))
        k('v_mul_f32 %s, v%d, v%d' % (T(3), b, vre))
        k('v_fma_f32 %s, -%s, v%d, %s' % (T(3), T(0), vim, T(3)))
        k('v_mul_f32 v%d, %s, %s' % (cr, T(2), T(1)))
        k('v_mul_f32 v%d, %s, %s' % (ci, T(3), T(1)))
    k('v_sub_f32 v%d, 0, v%d' % (b, b))

def csq(k, dr, di, sr_, si, t):
    k('v_mul_f32 v%d, v%d, v%d' % (t, si, si))
    k('v_mul_f32 v%d, v%d, v%d' % (di, sr_, si))
    k('v_fma_f32 v%d, v%d, v%d, -v%d' % (dr, sr_, sr_, t))
    k('v_add_f32 v%d, v%d, v%d' % (di, di, di))

def cmul(k, dr, di, ar_, ai, br, bi):
    k('v_mul_f32 v%d, v%d, v%d' % (dr, ar_, br))
    k('v_mul_f32 v%d, v%d, v%d' % (di, ar_, bi))
    k('v_fma_f32 v%d, -v%d, v%d, v%d' % (dr, ai, bi, dr))
    k('v_fmac_f32 v%d, v%d, v%d' % (di, ai, br))

def header(k):
    k.L.append('.p2align 8')
    k.L.append('.type %s,@function' % k.name)
    k.label(k.name)

def desc(name, nv, acc_off, ns=102):
    return '''.p2align 6
.amdhsa_kernel %s
  .amdhsa_next_free_vgpr %d
  .amdhsa_next_free_sgpr %d
  .amdhsa_accum_offset %d
  .amdhsa_group_segment_fixed_size 0
  .amdhsa_kernarg_size 128
  .amdhsa_user_sgpr_count 2
  .amdhsa_user_sgpr_kernarg_segment_ptr 1
  .amdhsa_system_sgpr_workgroup_id_x 1
.end_amdhsa_kernel''' % (name, nv, ns, acc_off)

def gen_k0():
    k = K('k0_kernel'); header(k)
    END = k.newlabel('end')
    k('s_cmp_ge_u32 s2, 256'); k('s_cbranch_scc1 %s' % END)
    k('s_load_dwordx16 s[16:31], s[0:1], 0')
    k('s_load_dwordx2 s[32:33], s[0:1], 120')
    k('v_lshrrev_b32 v1, 6, v0')
    k('v_and_b32 v2, 63, v0')
    k('v_readfirstlane_b32 s4, v1')
    stamp(k, 0, real=True); stamp(k, 1)
    k('v_and_b32 v3, 15, v0')
    k('v_bfe_u32 v4, v0, 4, 2')
    k('s_lshr_b32 s5, s2, 3')
    k('s_and_b32 s6, s2, 7')
    k('v_lshrrev_b32 v5, 2, v3'); k('v_lshlrev_b32 v5, 4, v5')
    k('v_and_b32 v6, 3, v3'); k('v_add_u32 v5, v5, v6')
    k('s_lshl_b32 s7, s4, 2'); k('s_lshl_b32 s8, s5, 6'); k('s_add_u32 s7, s7, s8')
    k('v_add_u32 v5, s7, v5')
    k('v_mul_u32_u24 v5, 1152, v5')
    k('v_lshl_add_u32 v5, v4, 4, v5')
    k('s_mul_i32 s7, s6, 72'); k('s_lshl_b32 s8, s4, 3'); k('s_add_u32 s7, s7, s8')
    k('v_and_b32 v6, 7, v0'); k('v_add_u32 v6, s7, v6')
    k('v_lshlrev_b32 v7, 1, v6')
    k('v_mul_u32_u24 v8, 1152, v6'); k('v_lshl_add_u32 v8, v4, 4, v8')
    k('v_and_b32 v9, 8, v0'); k('v_cmp_ne_u32 s[10:11], 0, v9')
    k('s_waitcnt lgkmcnt(0)')
    srd(k, 36, 16, 2048 * 1152)
    srd(k, 40, 18, 1152); srd(k, 44, 20, 1152); srd(k, 48, 30, 1152)
    k('v_mov_b32 v10, s22'); k('v_mov_b32 v11, s23'); k('v_mov_b32 v12, s24'); k('v_mov_b32 v13, s25')
    k('v_cndmask_b32 v10, v10, v12, s[10:11]'); k('v_cndmask_b32 v11, v11, v13, s[10:11]')
    k('v_add_co_u32 v10, vcc, v10, v8'); k('v_addc_co_u32 v11, vcc, 0, v11, vcc')
    k('v_add_co_u32 v12, vcc, 0x9000, v10'); k('v_addc_co_u32 v13, vcc, 0, v11, vcc')
    k('v_add_co_u32 v14, vcc, 0x9000, v12'); k('v_addc_co_u32 v15, vcc, 0, v13, vcc')
    BA = [10, 12, 14]
    X0 = 40
    F0 = 112
    PR = 16
    SK1 = k.newlabel('sk')
    k('s_cmp_lg_u32 s4, 0'); k('s_cbranch_scc1 %s' % SK1)
    for s in range(18):
        k('global_load_dwordx4 %s, v[14:15], off offset:%d' % (ar(144 + 4 * s, 4), 64 * s))
    k.label(SK1)
    for n in range(3):
        k('buffer_load_ushort v%d, v7, s[40:43], 0 offen offset:%d' % (PR + n, 64 * n))
        k('buffer_load_ushort v%d, v7, s[44:47], 0 offen offset:%d' % (PR + 3 + n, 64 * n))
        k('buffer_load_ushort v%d, v7, s[48:51], 0 offen offset:%d' % (PR + 6 + n, 64 * n))
    for s in range(18):
        k('buffer_load_dwordx4 %s, v5, s[36:39], 0 offen offset:%d' % (vr(X0 + 4 * s, 4), 64 * s))
    for n in range(2):
        for s in range(18):
            k('global_load_dwordx4 %s, v[%d:%d], off offset:%d' % (ar(72 * n + 4 * s, 4), BA[n], BA[n] + 1, 64 * s))
    stamp(k, 2)
    k('s_waitcnt vmcnt(54)')
    stamp(k, 3)
    for n in range(3):
        lam_params(k, PR + n, PR + 3 + n, PR + 6 + n, F0, dict(a=25 + n, b=28 + n, cr=31 + n, ci=34 + n))
    for n in range(3):
        csq(k, 16 + n, 19 + n, 25 + n, 28 + n, F0)
        for _ in range(3): csq(k, 16 + n, 19 + n, 16 + n, 19 + n, F0)
    for n in range(3):
        k('v_sub_f32 v%d, 0, v%d' % (F0, 28 + n)); k('v_cndmask_b32 v%d, v%d, v%d, s[10:11]' % (28 + n, F0, 28 + n))
        k('v_sub_f32 v%d, 0, v%d' % (F0, 19 + n)); k('v_cndmask_b32 v%d, v%d, v%d, s[10:11]' % (19 + n, F0, 19 + n))
        k('v_add_f32 v%d, v%d, v%d' % (31 + n, 31 + n, 31 + n))
        k('v_sub_f32 v%d, 0, v%d' % (F0, 31 + n)); k('v_cndmask_b32 v%d, v%d, v%d, s[10:11]' % (31 + n, 31 + n, F0))
        k('v_mul_f32 v%d, -2.0, v%d' % (34 + n, 34 + n))
    k('s_waitcnt vmcnt(36)')
    stamp(k, 4)
    k('s_mov_b32 s12, 0xffff0000')
    for i in range(72):
        k('v_lshlrev_b32 v%d, 16, v%d' % (F0 + 2 * i, X0 + i))
        k('v_and_b32 v%d, s12, v%d' % (F0 + 2 * i + 1, X0 + i))
    k('v_pk_add_f32 v[22:23], v[%d:%d], v[%d:%d]' % (F0, F0 + 1, F0 + 2, F0 + 3))
    k('v_pk_add_f32 v[38:39], v[%d:%d], v[%d:%d]' % (F0 + 4, F0 + 5, F0 + 6, F0 + 7))
    for i in range(4, 72):
        d = 22 if i % 2 == 0 else 38
        k('v_pk_add_f32 v[%d:%d], v[%d:%d], v[%d:%d]' % (d, d + 1, d, d + 1, F0 + 2 * i, F0 + 2 * i + 1))
    k('v_pk_add_f32 v[22:23], v[22:23], v[38:39]')
    k('v_add_f32 v22, v22, v23')
    def xq_sum(r, t):
        k('v_mov_b32 v%d, v%d' % (t, r)); k('v_permlane16_swap_b32 v%d, v%d' % (r, t)); k('v_add_f32 v%d, v%d, v%d' % (r, r, t))
        k('v_mov_b32 v%d, v%d' % (t, r)); k('v_permlane32_swap_b32 v%d, v%d' % (r, t)); k('v_add_f32 v%d, v%d, v%d' % (r, r, t))
    xq_sum(22, 23)
    k('v_mul_f32 v22, 0x3ae38e39, v22')
    k('v_cvt_pk_bf16_f32 v23, v22, v22'); k('v_lshlrev_b32 v24, 16, v23')
    k('v_sub_f32 v37, v22, v24')
    for i in range(72):
        k('v_pk_add_f32 v[%d:%d], v[%d:%d], v[24:25] op_sel_hi:[1,0] neg_lo:[0,1] neg_hi:[0,1]' % (F0 + 2 * i, F0 + 2 * i + 1, F0 + 2 * i, F0 + 2 * i + 1))
    k('v_pk_mul_f32 v[22:23], v[%d:%d], v[%d:%d]' % (F0, F0 + 1, F0, F0 + 1))
    k('v_pk_mul_f32 v[38:39], v[%d:%d], v[%d:%d]' % (F0 + 2, F0 + 3, F0 + 2, F0 + 3))
    for i in range(2, 72):
        d = 22 if i % 2 == 0 else 38
        k('v_pk_fma_f32 v[%d:%d], v[%d:%d], v[%d:%d], v[%d:%d]' % (d, d + 1, F0 + 2 * i, F0 + 2 * i + 1, F0 + 2 * i, F0 + 2 * i + 1, d, d + 1))
    k('v_pk_add_f32 v[22:23], v[22:23], v[38:39]')
    k('v_add_f32 v22, v22, v23')
    xq_sum(22, 23)
    k('v_mul_f32 v22, 0x3ae38e39, v22')
    k('v_fma_f32 v22, -v37, v37, v22')
    k('v_max_f32 v22, 0, v22')
    k('v_cvt_pk_bf16_f32 v22, v22, v22'); k('v_lshlrev_b32 v22, 16, v22')
    k('v_add_f32 v22, 0x3727c5ac, v22')
    k('v_cvt_pk_bf16_f32 v22, v22, v22'); k('v_lshlrev_b32 v22, 16, v22')
    k('v_sqrt_f32 v22, v22')
    k('v_cvt_pk_bf16_f32 v22, v22, v22'); k('v_lshlrev_b32 v22, 16, v22')
    k('v_rcp_f32 v22, v22')
    for i in range(72):
        k('v_cvt_pk_bf16_f32 v%d, v%d, v%d' % (X0 + i, F0 + 2 * i, F0 + 2 * i + 1))
    for i in range(72):
        k('v_lshlrev_b32 v%d, 16, v%d' % (F0 + 2 * i, X0 + i))
        k('v_and_b32 v%d, s12, v%d' % (F0 + 2 * i + 1, X0 + i))
    for i in range(72):
        k('v_pk_mul_f32 v[%d:%d], v[%d:%d], v[22:23] op_sel_hi:[1,0]' % (F0 + 2 * i, F0 + 2 * i + 1, F0 + 2 * i, F0 + 2 * i + 1))
    k('s_mul_i32 s13, s4, 18432')
    k('v_lshlrev_b32 v37, 4, v2'); k('v_add_u32 v38, s13, v37')
    for s in range(18):
        for j in range(4):
            i = 4 * s + j
            k('v_cvt_pk_bf16_f32 v%d, v%d, v%d' % (X0 + i, F0 + 2 * i, F0 + 2 * i + 1))
        k('ds_write_b128 v38, %s offset:%d' % (vr(X0 + 4 * s, 4), 1024 * s))
    k('s_waitcnt lgkmcnt(0)')
    stamp(k, 5)
    k('s_barrier')
    stamp(k, 6)
    srd(k, 52, 32, SZ_XN, WS_XN)
    k('v_and_b32 v40, 31, v2'); k('v_lshrrev_b32 v41, 5, v2')
    k('v_bfe_u32 v42, v40, 2, 2'); k('v_mul_u32_u24 v42, 18432, v42')
    k('v_lshrrev_b32 v43, 4, v40'); k('v_lshlrev_b32 v43, 2, v43'); k('v_and_b32 v44, 3, v40'); k('v_add_u32 v43, v43, v44')
    k('v_lshl_add_u32 v42, v43, 4, v42')
    k('s_mul_i32 s14, s6, 9'); k('s_add_u32 s14, s14, s4')
    k('s_mul_i32 s15, s5, 73728')
    SK2 = k.newlabel('sk')
    for n in range(3):
        if n == 2:
            k('s_cmp_lg_u32 s4, 0'); k('s_cbranch_scc1 %s' % SK2)
        k('s_add_u32 s56, s14, %d' % (4 * n))
        k('s_and_b32 s57, s56, 1'); k('s_lshl_b32 s57, s57, 7')
        k('s_and_b32 s58, s56, -2')
        k('v_add_u32 v45, s58, v41')
        k('v_lshrrev_b32 v46, 2, v45'); k('v_lshlrev_b32 v46, 10, v46')
        k('v_and_b32 v45, 3, v45'); k('v_lshl_add_u32 v46, v45, 8, v46')
        k('v_add3_u32 v46, v46, v42, s57')
        k('ds_read_b128 %s, v46' % vr(48 + 4 * n, 4))
        k('s_lshl_b32 s59, s56, 10'); k('s_add_u32 s59, s59, s15')
        k('s_waitcnt lgkmcnt(0)')
        k('buffer_store_dwordx4 %s, v37, s[52:55], s59 offen' % vr(48 + 4 * n, 4))
    k.label(SK2)
    AC = 64
    AF = 112
    k('v_add_u32 v38, 36864, v37')
    def rdA(s):
        for m in range(4):
            k('ds_read_b128 %s, v%d offset:%d' % (vr(AF + 16 * (s & 1) + 4 * m, 4), 37 if m < 2 else 38, ((m & 1) * 18 + s) * 1024))
    rdA(0)
    k('s_waitcnt vmcnt(0)')
    stamp(k, 7)
    for s in range(18):
        if s + 1 < 18:
            rdA(s + 1); k('s_waitcnt lgkmcnt(4)')
        else:
            k('s_waitcnt lgkmcnt(0)')
        for n in range(3):
            for m in range(4):
                d = vr(AC + 16 * n + 4 * m, 4)
                k('v_mfma_f32_16x16x32_bf16 %s, %s, %s, %s' % (d, vr(AF + 16 * (s & 1) + 4 * m, 4), ar(72 * n + 4 * s, 4), d if s else '0'))
    stamp(k, 8)
    U0 = 112
    for n in range(3):
        for j in range(16):
            k('v_mul_f32 v%d, v%d, v%d' % (U0 + 16 * n + j, 31 + n, AC + 16 * n + j))
        for j in range(16):
            k('v_fmac_f32_dpp v%d, v%d, v%d %s' % (U0 + 16 * n + j, AC + 16 * n + j, 34 + n, DPP8))
    srd(k, 52, 32, SZ_U, WS_U)
    k('s_mul_i32 s15, s5, 72'); k('s_add_u32 s15, s15, s14')
    k('s_lshl_b32 s56, s15, 12')
    def storeU(n):
        k('s_add_u32 s57, s56, %d' % (n * 4 * 4096))
        for m in range(4):
            k('buffer_store_dwordx4 %s, v37, s[52:55], s57 offen offset:%d' % (vr(U0 + 16 * n + 4 * m, 4), 1024 * m))
    storeU(0); storeU(1)
    SK3 = k.newlabel('sk')
    k('s_cmp_lg_u32 s4, 0'); k('s_cbranch_scc1 %s' % SK3)
    storeU(2)
    k.label(SK3)
    E = [64, 68]
    for n in range(3): k('v_mov_b32 v%d, v%d' % (E[0] + n, U0 + 16 * n))
    for j in range(1, 16):
        a, b = E[(j - 1) & 1], E[j & 1]
        for n in range(3): k('v_fma_f32 v%d, v%d, v%d, v%d' % (b + n, 25 + n, a + n, U0 + 16 * n + j))
        for n in range(3): k('v_fmac_f32_dpp v%d, v%d, v%d %s' % (b + n, a + n, 28 + n, DPP8))
    ef = E[15 & 1]
    k('s_mul_i32 s13, s4, 768'); k('s_add_u32 s13, s13, 73728')
    k('v_lshlrev_b32 v40, 2, v2'); k('v_add_u32 v41, s13, v40')
    k('v_lshlrev_b32 v42, 2, v3'); k('v_add_u32 v42, s13, v42')
    for n in range(3): k('ds_write_b32 v41, v%d offset:%d' % (ef + n, 256 * n))
    G = 72
    for n in range(3):
        k('ds_read2_b32 %s, v42 offset0:%d offset1:%d' % (vr(G + 4 * n, 2), 64 * n, 64 * n + 16))
        k('ds_read2_b32 %s, v42 offset0:%d offset1:%d' % (vr(G + 4 * n + 2, 2), 64 * n + 32, 64 * n + 48))
    k('v_cmp_eq_u32 s[60:61], 1, v4'); k('v_cmp_eq_u32 s[62:63], 2, v4'); k('v_cmp_eq_u32 s[64:65], 3, v4')
    k('s_waitcnt lgkmcnt(0)')
    for j in range(1, 4):
        for n in range(3): k('v_fmac_f32 v%d, v%d, v%d' % (G + 4 * n + j, 16 + n, G + 4 * n + j - 1))
        for n in range(3): k('v_fmac_f32_dpp v%d, v%d, v%d %s' % (G + 4 * n + j, G + 4 * n + j - 1, 19 + n, DPP8))
    for n in range(3):
        k('v_cndmask_b32 v%d, 0, v%d, s[60:61]' % (84 + n, G + 4 * n))
        k('v_cndmask_b32 v%d, v%d, v%d, s[62:63]' % (84 + n, 84 + n, G + 4 * n + 1))
        k('v_cndmask_b32 v%d, v%d, v%d, s[64:65]' % (84 + n, 84 + n, G + 4 * n + 2))
    srd(k, 52, 32, SZ_SQ, WS_SQ)
    srd(k, 68, 32, SZ_E, WS_E)
    k('s_lshl_b32 s56, s15, 8')
    k('s_lshl_b32 s57, s14, 12'); k('s_lshl_b32 s58, s5, 2'); k('s_add_u32 s57, s57, s58')
    k('v_lshlrev_b32 v43, 8, v3')
    k('v_mov_b32 v44, 0')
    def storeS(n):
        k('buffer_store_dword v%d, v40, s[52:55], s56 offen offset:%d' % (84 + n, 1024 * n))
        k('s_add_u32 s58, s57, %d' % (n * 4 * 4096))
        k('buffer_store_dword v%d, v43, s[68:71], s58 offen offset:128' % (G + 4 * n + 3))
        k('buffer_store_dword v44, v43, s[68:71], s58 offen')
    storeS(0); storeS(1)
    SK4 = k.newlabel('sk')
    k('s_cmp_lg_u32 s4, 0'); k('s_cbranch_scc1 %s' % SK4)
    storeS(2)
    k.label(SK4)
    stamp(k, 9)
    srd(k, 52, 32, SZ_CT, WS_CT)
    k('s_lshl_b32 s56, s2, 2'); k('s_add_u32 s56, s56, s4')
    LP = k.newlabel('ct')
    k.label(LP)
    k('s_cmp_ge_u32 s56, 648'); k('s_cselect_b32 s57, 1, 0')
    k('s_cselect_b32 s72, s28, s26'); k('s_cselect_b32 s73, s29, s27')
    k('s_mov_b32 s74, %d' % (576 * 1152)); k('s_mov_b32 s75, 0x20000')
    k('s_mul_i32 s58, s57, 648'); k('s_sub_u32 s58, s56, s58')
    k('s_mul_i32 s59, s58, 911'); k('s_lshr_b32 s59, s59, 16')
    k('s_mul_i32 s60, s59, 72'); k('s_sub_u32 s60, s58, s60')
    k('s_lshl_b32 s61, s59, 6')
    k('v_add_u32 v45, s61, v2')
    k('v_mul_u32_u24 v46, 1152, v45')
    k('s_lshl_b32 s62, s60, 4')
    k('buffer_load_dwordx4 v[48:51], v46, s[72:75], s62 offen')
    k('v_lshlrev_b32 v45, 1, v45')
    k('s_lshl_b32 s63, s57, 2'); k('s_add_u32 s63, s63, s62'); k('s_mul_i32 s63, s63, 1152')
    k('s_add_u32 s64, s63, %d' % (8 * 1152))
    k('s_waitcnt vmcnt(0)')
    for j in range(8):
        op = 'buffer_store_short_d16_hi' if j & 1 else 'buffer_store_short'
        k('%s v%d, v45, s[52:55], s%d offen offset:%d' % (op, 48 + (j >> 1), 63 + (j >> 2), (j & 3) * 1152))
    k('s_add_u32 s56, s56, 1024'); k('s_cmp_lt_u32 s56, 1296'); k('s_cbranch_scc1 %s' % LP)
    stamp(k, 10)
    if STAMP: k('s_waitcnt vmcnt(0)')
    stamp_end(k, 0)
    k.label(END)
    k('s_endpgm')
    return k, desc(k.name, 512, 256), (256, 256, 73728 + 3072)


class Sim:
    def __init__(s, k):
        s.k = k; s.N = {}; s.emit = False; s.reset()
    def reset(s):
        s.q = {'vm': [], 'lg': []}
    def out(s, t):
        if s.emit: s.k(t)
    def op(s, cnt, tag, text):
        s.q[cnt].append(tag); s.out(text)
    def wait(s, site, vm=None, lg=None):
        res = []
        for cnt, tags, name, mx in (('vm', vm, 'vmcnt', 63), ('lg', lg, 'lgkmcnt', 15)):
            if tags is None: continue
            key = (site, cnt)
            if not s.emit:
                q = s.q[cnt]; n = mx
                for t in tags:
                    idx = [i for i, x in enumerate(q) if x == t]
                    if idx: n = min(n, len(q) - 1 - idx[-1])
                    else: assert False, ('tag not issued', t, site)
                s.N[key] = min(s.N.get(key, mx), n)
            else:
                res.append('%s(%d)' % (name, s.N[key]))
        if s.emit and res: s.k('s_waitcnt ' + ' '.join(res))

def interleave(mf, fill):
    for i, m in enumerate(mf):
        m()
        for f in fill.get(i, []): f()

EMU_GU = False
def gen_k1(R=6):
    k = K('k1_kernel'); header(k)
    END = k.newlabel('end')
    SLAB = 37120; UREG = 18432 + 128; SCR = 4 * SLAB
    k('s_cmp_ge_u32 s2, 256'); k('s_cbranch_scc1 %s' % END)
    k('s_load_dwordx4 s[16:19], s[0:1], 80')
    k('s_load_dwordx4 s[20:23], s[0:1], 8')
    k('s_load_dwordx2 s[24:25], s[0:1], 56')
    k('s_load_dwordx2 s[32:33], s[0:1], 120')
    k('v_lshrrev_b32 v1, 6, v0')
    k('v_and_b32 v2, 63, v0')
    k('v_readfirstlane_b32 s4, v1')
    stamp(k, 0, real=True); stamp(k, 1)
    k('v_and_b32 v3, 15, v0')
    k('v_bfe_u32 v4, v0, 4, 2')
    k('s_and_b32 s5, s2, 1')
    k('s_bfe_u32 s6, s2, 0x20001')
    k('s_lshr_b32 s7, s2, 3')
    k('s_and_b32 s8, s7, 3'); k('s_lshl_b32 s9, s5, 2'); k('s_add_u32 s8, s8, s9')
    k('s_lshr_b32 s9, s7, 2')
    k('s_lshl_b32 s10, s6, 3'); k('s_add_u32 s10, s10, s9')
    k('s_and_b32 s11, s7, 15'); k('s_lshl_b32 s12, s5, 4'); k('s_add_u32 s11, s11, s12')
    k('s_lshr_b32 s12, s7, 4'); k('s_lshl_b32 s13, s6, 1'); k('s_add_u32 s12, s12, s13')
    for i in range(9):
        k('v_add_u32 v5, %d, v2' % (64 * i))
        k('v_mul_u32_u24 v6, 3641, v5'); k('v_lshrrev_b32 v6, 16, v6')
        k('v_mul_u32_u24 v7, 18, v6'); k('v_sub_u32 v7, v5, v7')
        k('v_mul_u32_u24 v6, 9216, v6'); k('v_lshl_add_u32 v%d, v7, 4, v6' % (8 + i))
        if i % 3: k('v_subrev_u32 v%d, %d, v%d' % (8 + i, 1024 * (i % 3), 8 + i))
    k('v_lshlrev_b32 v17, 4, v2')
    k('v_and_b32 v5, 1, v4'); k('v_mul_u32_u24 v5, %d, v5' % UREG)
    k('v_lshrrev_b32 v6, 1, v4'); k('v_lshlrev_b32 v6, 3, v6'); k('v_bfe_u32 v7, v0, 2, 2'); k('v_add_u32 v6, v6, v7')
    k('v_mul_u32_u24 v6, 288, v6'); k('v_add_u32 v5, v5, v6')
    k('v_and_b32 v6, 3, v0'); k('v_lshl_add_u32 v18, v6, 3, v5')
    k('v_mov_b32 v19, v18')
    k('s_waitcnt lgkmcnt(0)')
    k('s_cmp_ge_u32 s4, 2'); k('s_cselect_b32 s26, s18, s16'); k('s_cselect_b32 s27, s19, s17')
    k('s_and_b32 s13, s4, 1'); k('s_mul_i32 s14, s13, %d' % (32 * 9216)); k('s_mul_i32 s15, s10, 288'); k('s_add_u32 s14, s14, s15')
    k('s_sub_u32 s15, %d, s14' % (576 * 9216))
    srd(k, 36, 26, 's15', 0, 's14')
    k('s_lshr_b32 s28, s4, 1'); k('s_mul_i32 s28, s28, %d' % UREG); k('s_mul_i32 s13, s13, 9216'); k('s_add_u32 s28, s28, s13')
    k('s_lshl_b32 s13, s8, 2'); k('s_add_u32 s13, s13, s4'); k('s_mul_i32 s13, s13, 73728')
    srd(k, 40, 32, 73728, WS_XN, 's13')
    srd(k, 44, 32, SZ_H, WS_H)
    srd(k, 48, 32, SZ_U, WS_U); srd(k, 52, 32, SZ_SQ, WS_SQ); srd(k, 56, 32, SZ_E, WS_E)
    srd(k, 60, 20, 1152); srd(k, 64, 22, 1152); srd(k, 68, 24, 1152)
    ACCV = 48; NV = 13
    def acc(t, xt):
        i = 2 * t + xt
        return vr(ACCV + 16 * i, 16) if i < NV else ar(16 * (i - NV), 16)
    WF = 80; XF = 152
    S = Sim(k)
    def dma(slab, grp, m0reg, soff):
        S.out('s_add_u32 m0, %s, %d' % (m0reg, grp * 3072))
        for i in range(3 * grp, 3 * grp + 3):
            S.op('vm', ('W', slab), 'buffer_load_dwordx4 v%d, s[36:39], %s offen offset:%d lds' % (8 + i, soff, 1024 * (i % 3)))
    def xload(s, soff):
        for xt in range(2):
            S.op('vm', ('X', s), 'buffer_load_dwordx4 %s, v17, s[40:43], %s offen offset:%d' % (ar(XF + 8 * (s % R) + 4 * xt, 4), soff, 1024 * xt))
    FB = 48
    U = lambda n: FB + 48 * n
    Er = lambda n: FB + 48 * n + 16
    SQr = lambda n: FB + 48 * n + 24
    PRE = lambda n: FB + 48 * n + 25
    PIM = lambda n: FB + 48 * n + 26
    PDT = lambda n: FB + 48 * n + 27
    A_ = lambda n: FB + 48 * n + 28
    B_ = lambda n: FB + 48 * n + 29
    T_ = lambda n, i: FB + 48 * n + 30 + i
    SKa = k.newlabel('sk'); SKb = k.newlabel('sk'); LOOP = k.newlabel('loop'); ENT = k.newlabel('ent')
    def fix_loads(n, cond):
        o = (lambda c, t, x: S.out(x)) if cond else S.op
        S.out('s_add_u32 s77, s74, %d' % (n * 4 * 4096))
        for m in range(4):
            o('vm', ('F', n), 'buffer_load_dwordx4 %s, v17, s[48:51], s77 offen offset:%d' % (vr(U(n) + 4 * m, 4), 1024 * m))
        o('vm', ('F', n), 'buffer_load_dword v%d, v20, s[52:55], s75 offen offset:%d' % (SQr(n), 1024 * n))
        S.out('s_add_u32 s78, s76, %d' % (n * 4 * 4096))
        o('vm', ('F', n), 'buffer_load_dwordx4 %s, v21, s[56:59], s78 offen' % vr(Er(n), 4))
        o('vm', ('F', n), 'buffer_load_dwordx4 %s, v21, s[56:59], s78 offen offset:16' % vr(Er(n) + 4, 4))
        o('vm', ('F', n), 'buffer_load_ushort v%d, v22, s[60:63], 0 offen offset:%d' % (PRE(n), 64 * n))
        o('vm', ('F', n), 'buffer_load_ushort v%d, v22, s[64:67], 0 offen offset:%d' % (PIM(n), 64 * n))
        o('vm', ('F', n), 'buffer_load_ushort v%d, v22, s[68:71], 0 offen offset:%d' % (PDT(n), 64 * n))
    def step(s, first=False):
        j, kk = s >> 2, s & 3
        pos = s % 12
        site = ('first' if first else pos)
        vm = [('X', s)]
        if kk == 3 and j + 1 <= 8: vm.append(('W', j + 1))
        S.wait(site, vm=vm, lg=[('R', s)])
        if kk == 3:
            S.out('s_barrier')
            S.out('s_add_u32 s80, s28, s81')
            S.out('s_add_u32 s81, s81, %d' % SLAB)
            S.out('s_cmp_eq_u32 s81, %d' % (4 * SLAB)); S.out('s_cselect_b32 s81, 0, s81')
            S.out('v_add_u32 v19, s81, v18')
            S.out('s_add_u32 s82, s82, %d' % (64 * 9216))
        buf = s & 1; nb = 1 - buf
        mf = []
        for t in range(9):
            for xt in range(2):
                a = acc(t, xt)
                mf.append(lambda t=t, xt=xt, a=a: S.out('v_mfma_f32_32x32x16_bf16 %s, %s, %s, %s' % (a, ar(WF + 36 * buf + 4 * t, 4), ar(XF + 8 * (s % R) + 4 * xt, 4), '0' if first else a)))
        fill = {}
        roff = ((kk + 1) & 3) * 4608
        g = 0
        for t in range(9):
            for h in range(2):
                fill.setdefault(g, []).append(lambda t=t, h=h: S.op('lg', ('R', s + 1), 'ds_read_b64_tr_b16 %s, v19 offset:%d' % (ar(WF + 36 * nb + 4 * t + 2 * h, 2), roff + 32 * t + 1152 * h)))
                if (2 * t + h) % 4 != 0: g += 1
        def xl():
            xload(s - 1 + R, 's83'); S.out('s_add_u32 s83, s83, 2048')
        fill.setdefault(0, []).insert(0, xl)
        if kk in (3, 0, 1):
            grp = {3: 0, 0: 1, 1: 2}[kk]
            slab = j + 4 if kk == 3 else j + 3
            fill.setdefault(14, []).append(lambda: dma(slab, grp, 's80', 's82'))
        interleave(mf, fill)
    def program():
        S.reset()
        o = S.out
        o('s_mov_b32 s82, 0')
        for g in range(3): dma(0, g, 's28', 's82')
        o('s_mov_b32 s83, 0')
        for s in range(R - 1):
            xload(s, 's83'); o('s_add_u32 s83, s83, 2048')
        o('s_add_u32 s80, s28, %d' % SLAB); o('s_mov_b32 s82, %d' % (64 * 9216))
        for g in range(3): dma(1, g, 's80', 's82')
        o('s_mul_i32 s72, s12, 9'); o('s_add_u32 s72, s72, s4')
        o('s_mul_i32 s73, s11, 72'); o('s_add_u32 s73, s73, s72')
        o('s_lshl_b32 s74, s73, 12'); o('s_lshl_b32 s75, s73, 8')
        o('s_lshl_b32 s76, s72, 12'); o('s_lshl_b32 s77, s11, 2'); o('s_add_u32 s76, s76, s77')
        o('v_lshlrev_b32 v20, 2, v2')
        o('v_lshlrev_b32 v21, 8, v3'); o('v_lshlrev_b32 v5, 5, v4'); o('v_sub_u32 v21, v21, v5'); o('v_add_u32 v21, 96, v21')
        o('s_lshl_b32 s77, s72, 4'); o('v_and_b32 v22, 7, v0'); o('v_lshlrev_b32 v22, 1, v22'); o('v_add_u32 v22, s77, v22')
        o('s_cmp_lg_u32 s4, 0'); o('s_cbranch_scc1 %s' % SKa)
        fix_loads(2, True)
        if S.emit: k.label(SKa)
        fix_loads(0, False); fix_loads(1, False)
        o('s_add_u32 s80, s28, %d' % (2 * SLAB)); o('s_mov_b32 s82, %d' % (2 * 64 * 9216))
        for g in range(3): dma(2, g, 's80', 's82')
        o('s_add_u32 s80, s28, %d' % (3 * SLAB)); o('s_mov_b32 s82, %d' % (3 * 64 * 9216))
        dma(3, 0, 's80', 's82')
        o('s_mov_b32 s81, 0')
        o('v_and_b32 v5, 8, v0'); o('v_cmp_ne_u32 s[84:85], 0, v5')
        o('v_cmp_eq_u32 s[86:87], 1, v4'); o('v_cmp_eq_u32 s[88:89], 2, v4'); o('v_cmp_eq_u32 s[90:91], 3, v4')
        stamp(k, 2, emit=S.emit)
        S.wait('fix', vm=[('F', 0), ('F', 1)])
        stamp(k, 3, emit=S.emit)
        if S.emit:
            N3 = range(3)
            for n in N3: lam_params(k, PRE(n), PIM(n), PDT(n), T_(n, 0), dict(a=A_(n), b=B_(n)))
            for n in N3: csq(k, T_(n, 0), T_(n, 1), A_(n), B_(n), T_(n, 14))
            for _ in range(3):
                for n in N3: csq(k, T_(n, 0), T_(n, 1), T_(n, 0), T_(n, 1), T_(n, 14))
            for n in N3: csq(k, T_(n, 2), T_(n, 3), T_(n, 0), T_(n, 1), T_(n, 14))
            for n in N3: cmul(k, T_(n, 4), T_(n, 5), T_(n, 0), T_(n, 1), T_(n, 2), T_(n, 3))
            for n in N3: csq(k, T_(n, 6), T_(n, 7), T_(n, 2), T_(n, 3), T_(n, 14))
            for n in N3: csq(k, T_(n, 8), T_(n, 9), T_(n, 6), T_(n, 7), T_(n, 14))
            for _ in range(2):
                for n in N3: csq(k, T_(n, 8), T_(n, 9), T_(n, 8), T_(n, 9), T_(n, 14))
            for n in N3: csq(k, T_(n, 10), T_(n, 11), T_(n, 8), T_(n, 9), T_(n, 14))
            for n in N3: cmul(k, T_(n, 12), T_(n, 13), T_(n, 8), T_(n, 9), T_(n, 10), T_(n, 11))
            for n in N3:
                for b0 in (0, 8):
                    k('v_cndmask_b32 v%d, 1.0, v%d, s[86:87]' % (T_(n, b0), T_(n, b0)))
                    k('v_cndmask_b32 v%d, 0, v%d, s[86:87]' % (T_(n, b0 + 1), T_(n, b0 + 1)))
                    for c in range(2):
                        k('v_cndmask_b32 v%d, v%d, v%d, s[88:89]' % (T_(n, b0 + c), T_(n, b0 + c), T_(n, b0 + 2 + c)))
                        k('v_cndmask_b32 v%d, v%d, v%d, s[90:91]' % (T_(n, b0 + c), T_(n, b0 + c), T_(n, b0 + 4 + c)))
                for r in (B_(n), T_(n, 1), T_(n, 7), T_(n, 9)):
                    k('v_cndmask_b32 v%d, -v%d, v%d, s[84:85]' % (r, r, r))
            for j in range(1, 8):
                for n in N3: k('v_fmac_f32 v%d, v%d, v%d' % (Er(n) + j, T_(n, 6), Er(n) + j - 1))
                for n in N3: k('v_fmac_f32_dpp v%d, v%d, v%d %s' % (Er(n) + j, Er(n) + j - 1, T_(n, 7), DPP8))
            for n in N3: k('v_mul_f32 v%d, v%d, v%d' % (T_(n, 2), T_(n, 8), Er(n) + 7))
            for n in N3: k('v_fmac_f32_dpp v%d, v%d, v%d %s' % (T_(n, 2), Er(n) + 7, T_(n, 9), DPP8))
            for sw in ('v_permlane16_swap_b32', 'v_permlane32_swap_b32'):
                for n in N3: k('v_mov_b32 v%d, v%d' % (T_(n, 3), T_(n, 2)))
                for n in N3: k('%s v%d, v%d' % (sw, T_(n, 2), T_(n, 3)))
                for n in N3: k('v_add_f32 v%d, v%d, v%d' % (T_(n, 2), T_(n, 2), T_(n, 3)))
            for n in N3: k('v_fmac_f32 v%d, v%d, v%d' % (SQr(n), T_(n, 0), T_(n, 2)))
            for n in N3: k('v_fmac_f32_dpp v%d, v%d, v%d %s' % (SQr(n), T_(n, 2), T_(n, 1), DPP8))
            for j in range(16):
                prev = (lambda n: SQr(n)) if j == 0 else (lambda n: U(n) + j - 1)
                for n in N3: k('v_fmac_f32 v%d, v%d, v%d' % (U(n) + j, A_(n), prev(n)))
                for n in N3: k('v_fmac_f32_dpp v%d, v%d, v%d %s' % (U(n) + j, prev(n), B_(n), DPP8))
            for n in N3:
                for j in range(8): k('v_cvt_pk_bf16_f32 v%d, v%d, v%d' % (T_(n, j), U(n) + 2 * j, U(n) + 2 * j + 1))
            k('s_mul_i32 s77, s4, 3072'); k('s_add_u32 s77, s77, %d' % SCR)
            k('v_mul_u32_u24 v5, 192, v3'); k('v_lshl_add_u32 v5, v4, 5, v5'); k('v_add_u32 v5, s77, v5')
            k('v_bfe_u32 v6, v0, 2, 2'); k('v_mul_u32_u24 v6, 192, v6'); k('v_lshl_add_u32 v6, v4, 5, v6')
            k('v_and_b32 v7, 3, v0'); k('v_lshl_add_u32 v6, v7, 3, v6'); k('v_add_u32 v6, s77, v6')
            k('v_lshrrev_b32 v7, 5, v2'); k('v_mul_u32_u24 v7, %d, v7' % (360 * 1024)); k('v_and_b32 v23, 31, v2'); k('v_lshl_add_u32 v7, v23, 4, v7')
            k('s_mul_i32 s77, s11, 720'); k('s_mul_i32 s78, s6, 72'); k('s_add_u32 s77, s77, s78'); k('s_add_u32 s77, s77, s72'); k('s_add_u32 s77, s77, 72')
            k('s_lshl_b32 s77, s77, 10')
        for n in (2, 0, 1):
            cond = n == 2
            if cond: o('s_cmp_lg_u32 s4, 0'); o('s_cbranch_scc1 %s' % SKb)
            o('ds_write_b128 v5, %s' % vr(T_(n, 0), 4)); o('ds_write_b128 v5, %s offset:16' % vr(T_(n, 4), 4))
            for mm in range(4): o('ds_read_b64_tr_b16 %s, v6 offset:%d' % (vr(U(n) + 2 * mm, 2), 768 * mm))
            o('s_add_u32 s78, s77, %d' % (n * 4096))
            o('s_waitcnt lgkmcnt(0)')
            for hh in range(2):
                t = 'buffer_store_dwordx4 %s, v7, s[44:47], s78 offen offset:%d' % (vr(U(n) + 4 * hh, 4), 512 * hh)
                if cond: o(t)
                else: S.op('vm', ('FS', n), t)
            if cond and S.emit: k.label(SKb)
        stamp(k, 4, emit=S.emit)
        S.wait('w0', vm=[('W', 0)])
        o('s_barrier')
        stamp(k, 5, emit=S.emit)
        for t in range(9):
            for h in range(2):
                S.op('lg', ('R', 0), 'ds_read_b64_tr_b16 %s, v19 offset:%d' % (ar(WF + 4 * t + 2 * h, 2), 32 * t + 1152 * h))
        o('s_mov_b32 s92, 0')
        step(0, first=True)
        o('s_branch %s' % ENT)
        if S.emit:
            k.label(LOOP)
            step(12)
            k.label(ENT)
            for s in range(13, 24): step(s)
            if STAMP:
                k('s_memtime s[98:99]'); k('s_add_u32 m0, s92, 6'); k('s_waitcnt lgkmcnt(0)'); k('v_writelane_b32 v1, s98, m0')
            k('s_add_u32 s92, s92, 1'); k('s_cmp_lt_u32 s92, 3'); k('s_cbranch_scc1 %s' % LOOP)
        else:
            for s in range(1, 36): step(s)
    S.emit = False; program()
    S.emit = True; program()
    k('s_lshl_b32 s72, s8, 3'); k('s_lshl_b32 s73, s4, 1'); k('s_add_u32 s72, s72, s73'); k('s_mul_i32 s72, s72, 360')
    k('s_mul_i32 s73, s6, 90'); k('s_add_u32 s72, s72, s73'); k('s_mul_i32 s73, s9, 9'); k('s_add_u32 s72, s72, s73')
    k('s_lshl_b32 s72, s72, 10')
    k('s_mov_b32 s74, 0xffff0000')
    for t in range(9):
        for xt in range(2):
            i = 2 * t + xt
            if i < NV: b = ACCV + 16 * i
            else:
                b = 24 if False else ACCV + 16 * (i - NV)
                for j in range(16): k('v_accvgpr_read_b32 v%d, a%d' % (b + j, 16 * (i - NV) + j))
            if EMU_GU:
                for j in range(0, 16, 2):
                    k('v_cvt_pk_bf16_f32 v24, v%d, v%d' % (b + j, b + j + 1))
                    k('v_lshlrev_b32 v%d, 16, v24' % (b + j)); k('v_and_b32 v%d, s74, v24' % (b + j + 1))
            for j in range(0, 8, 2):
                k('v_pk_mul_f32 v[%d:%d], v[%d:%d], v[%d:%d]' % (b + j, b + j + 1, b + j, b + j + 1, b + j + 8, b + j + 9))
            for j in range(4):
                k('v_cvt_pk_bf16_f32 v%d, v%d, v%d' % (b + 8 + j, b + 2 * j, b + 2 * j + 1))
            k('s_add_u32 s73, s72, %d' % (xt * 360 * 1024 + (t >> 2) * 4096))
            k('buffer_store_dwordx4 %s, v17, s[44:47], s73 offen offset:%d' % (vr(b + 8, 4), 1024 * (t & 3)))
    stamp(k, 10)
    if STAMP: k('s_waitcnt vmcnt(0)')
    stamp_end(k, 1)
    k.label(END)
    k('s_endpgm')
    return k, desc(k.name, 512, 256), (256, 256, 4 * SLAB + 4 * 3072)

def gen_k2():
    k = K('k2_kernel'); header(k)
    END = k.newlabel('end')
    SLAB = 28672; R = 15
    k('s_cmp_ge_u32 s2, 256'); k('s_cbranch_scc1 %s' % END)
    k('s_load_dwordx2 s[16:17], s[0:1], 96')
    k('s_load_dwordx2 s[32:33], s[0:1], 120')
    k('v_lshrrev_b32 v1, 6, v0')
    k('v_and_b32 v2, 63, v0')
    k('v_readfirstlane_b32 s4, v1')
    stamp(k, 0, real=True); stamp(k, 1)
    k('v_and_b32 v3, 15, v0')
    k('v_bfe_u32 v4, v0, 4, 2')
    k('s_and_b32 s5, s2, 1')
    k('s_bfe_u32 s6, s2, 0x20001')
    k('s_lshr_b32 s7, s2, 3')
    k('s_and_b32 s8, s7, 7'); k('s_lshl_b32 s9, s5, 3'); k('s_add_u32 s8, s8, s9')
    k('s_lshr_b32 s9, s7, 3')
    k('s_mul_i32 s10, s4, 448')
    k('v_add_u32 v15, s10, v2')
    for i in range(7):
        k('v_add_u32 v5, %d, v15' % (64 * i))
        k('v_mul_u32_u24 v6, 3641, v5'); k('v_lshrrev_b32 v6, 16, v6')
        k('v_mul_u32_u24 v7, 18, v6'); k('v_sub_u32 v7, v5, v7')
        k('v_mul_u32_u24 v6, 1152, v6'); k('v_lshl_add_u32 v%d, v7, 4, v6' % (8 + i))
        if i % 4: k('v_subrev_u32 v%d, %d, v%d' % (8 + i, 1024 * (i % 4), 8 + i))
    k('v_cmp_le_u32 vcc, 1728, v5'); k('v_mov_b32 v6, 0x7f000000'); k('v_cndmask_b32 v14, v14, v6, vcc')
    k('v_lshlrev_b32 v16, 9, v4'); k('v_lshl_add_u32 v16, v3, 4, v16')
    k('v_lshrrev_b32 v5, 1, v4'); k('v_lshlrev_b32 v5, 4, v5'); k('v_and_b32 v6, 1, v4'); k('v_lshl_add_u32 v5, v6, 2, v5')
    k('v_bfe_u32 v6, v0, 2, 2'); k('v_add_u32 v5, v5, v6'); k('v_mul_u32_u24 v5, 288, v5')
    k('v_and_b32 v6, 3, v0'); k('v_lshl_add_u32 v17, v6, 3, v5')
    k('v_add_u32 v18, %d, v17' % (2 * SLAB)); k('v_add_u32 v19, %d, v17' % (4 * SLAB))
    k('v_lshlrev_b32 v20, 4, v2')
    k('s_waitcnt lgkmcnt(0)')
    k('s_mul_i32 s10, s6, %d' % (1152 * 1152)); k('s_mul_i32 s11, s9, 288'); k('s_add_u32 s10, s10, s11')
    k('s_add_u32 s20, s16, s10'); k('s_addc_u32 s21, s17, 0'); k('s_sub_u32 s22, %d, s11' % (1152 * 1152))
    k('s_mul_i32 s10, s6, %d' % (288 * 1152)); k('s_add_u32 s10, s10, s11'); k('s_add_u32 s10, s10, 0x%x' % WS_CT)
    k('s_add_u32 s24, s32, s10'); k('s_addc_u32 s25, s33, 0'); k('s_sub_u32 s26, %d, s11' % (288 * 1152))
    k('s_mov_b32 s36, s20'); k('s_mov_b32 s37, s21'); k('s_mov_b32 s38, s22'); k('s_mov_b32 s39, 0x20000')
    k('s_lshl_b32 s10, s8, 2'); k('s_add_u32 s10, s10, s4'); k('s_mul_i32 s12, s10, 360'); k('s_mul_i32 s11, s6, 90'); k('s_add_u32 s12, s12, s11'); k('s_lshl_b32 s12, s12, 10')
    srd(k, 40, 32, 90 * 1024, WS_H, 's12')
    k('s_mul_i32 s28, s4, 7168')
    ACC = 64; WF = 136
    S = Sim(k)
    LOOP = k.newlabel('loop'); ENT = k.newlabel('ent')
    def dma(slab, grp):
        slot = slab % 5
        S.out('s_add_u32 m0, s28, %d' % (slot * SLAB + grp * 4096))
        for i in range(4 * grp, min(7, 4 * grp + 4)):
            S.op('vm', ('W', slab), 'buffer_load_dwordx4 v%d, s[36:39], s82 offen offset:%d lds' % (8 + i, 1024 * (i % 4)))
    def next_slab_srd():
        S.out('s_add_u32 s82, s82, %d' % (96 * 1152))
        S.out('s_add_u32 s84, s84, 1')
        S.out('s_cmp_eq_u32 s84, 12')
        S.out('s_cselect_b32 s36, s24, s36'); S.out('s_cselect_b32 s37, s25, s37'); S.out('s_cselect_b32 s38, s26, s38'); S.out('s_cselect_b32 s82, 0, s82')
    def hload(s):
        for m in range(2):
            S.op('vm', ('H', s), 'buffer_load_dwordx4 %s, v16, s[40:43], s83 offen offset:%d' % (ar(8 * (s % R) + 4 * m, 4), 256 * m))
        S.out('s_add_u32 s83, s83, 2048')
    def rd(s, ct, h):
        j, kk = s // 3, s % 3
        slot = j % 5
        base = 17 + slot // 2
        off = (slot & 1) * SLAB + kk * 32 * 288 + h * 8 * 288 + ct * 32
        S.op('lg', ('R', s, ct), 'ds_read_b64_tr_b16 %s, v%d offset:%d' % (vr(WF + 36 * (s & 1 if False else (s % 15) & 1) + 4 * ct + 2 * h, 2), base, off))
    def wf(s): return WF_BASE[(s % 15) % 3]
    WF_BASE = [136, 172, 208]
    def rd(s, ct, h):
        j, kk = s // 3, s % 3
        slot = j % 5
        base = 17 + slot // 2
        off = (slot & 1) * SLAB + kk * 32 * 288 + h * 8 * 288 + ct * 32
        S.op('lg', ('R', s, ct), 'ds_read_b64_tr_b16 %s, v%d offset:%d' % (vr(wf(s) + 4 * ct + 2 * h, 2), base, off))
    def step(s, first=False):
        j, kk = s // 3, s % 3
        pos = s % 15
        site = 'first' if first else pos
        vm = [('H', s)]
        if kk == 2:
            if j + 1 <= 14: vm.append(('W', j + 1))
            S.wait((site, 'a'), vm=vm, lg=[('R', s, 8)])
            S.out('s_barrier')
        else:
            S.wait((site, 'a'), vm=vm, lg=[('R', s, 2)])
        mf = []
        for ct in range(9):
            for m in range(2):
                a = vr(ACC + 8 * ct + 4 * m, 4)
                mf.append(lambda ct=ct, m=m, a=a: S.out('v_mfma_f32_16x16x32_bf16 %s, %s, %s, %s' % (a, vr(wf(s) + 4 * ct, 4), ar(8 * (s % R) + 4 * m, 4), '0' if first else a)))
        fill = {}
        for ct in range(9):
            fill.setdefault(ct, []).append(lambda ct=ct: rd(s + 1, ct, 0))
            fill.setdefault(ct, []).append(lambda ct=ct: rd(s + 1, ct, 1))
        if kk != 2:
            fill.setdefault(5, []).insert(0, lambda: S.wait((site, 'b'), lg=[('R', s, 8)]))
        fill.setdefault(9, []).append(lambda: hload(s - 1 + R))
        if kk == 2:
            fill.setdefault(11, []).append(next_slab_srd)
            fill.setdefault(12, []).append(lambda: dma(j + 5, 0))
        if kk == 0:
            fill.setdefault(12, []).append(lambda: dma(j + 4, 1))
        interleave(mf, fill)
    def program():
        S.reset(); o = S.out
        o('s_mov_b32 s82, 0'); o('s_mov_b32 s83, 0'); o('s_mov_b32 s84, 0')
        dma(0, 0); dma(0, 1)
        for s in range(3): hload(s)
        for j in range(1, 5):
            next_slab_srd()
            dma(j, 0)
            if j < 4: dma(j, 1)
            for s in range(3 * j, min(3 * j + 3, R - 1)): hload(s)
        stamp(k, 4, emit=S.emit)
        S.wait('w0', vm=[('W', 0)])
        o('s_barrier')
        stamp(k, 5, emit=S.emit)
        for ct in range(9):
            rd(0, ct, 0); rd(0, ct, 1)
        o('s_mov_b32 s92, 0')
        step(0, first=True)
        o('s_branch %s' % ENT)
        if S.emit:
            k.label(LOOP)
            step(15)
            k.label(ENT)
            for s in range(16, 30): step(s)
            if STAMP:
                k('s_memtime s[98:99]'); k('s_add_u32 m0, s92, 6'); k('s_waitcnt lgkmcnt(0)'); k('v_writelane_b32 v1, s98, m0')
            k('s_add_u32 s92, s92, 1'); k('s_cmp_lt_u32 s92, 3'); k('s_cbranch_scc1 %s' % LOOP)
        else:
            for s in range(1, 45): step(s)
    S.emit = False; program()
    S.emit = True; program()
    k('s_lshl_b32 s11, s6, 6'); k('s_add_u32 s11, s11, s10'); k('s_lshl_b32 s11, s11, 2'); k('s_add_u32 s11, s11, s9'); k('s_mul_i32 s11, s11, 18432')
    srd(k, 44, 32, 18432, WS_P, 's11')
    for ct in range(9):
        for m in range(2):
            i = 2 * ct + m
            if i % 4 == 0: k('s_mov_b32 s12, %d' % (i * 1024))
            k('buffer_store_dwordx4 %s, v20, s[44:47], s12 offen offset:%d' % (vr(ACC + 4 * i, 4), 1024 * (i % 4)))
    stamp(k, 10)
    if STAMP: k('s_waitcnt vmcnt(0)')
    stamp_end(k, 2)
    k.label(END)
    k('s_endpgm')
    return k, desc(k.name, 256 + 120, 256), (256, 256, 5 * SLAB)

def gen_k3():
    k = K('k3_kernel'); header(k)
    END = k.newlabel('end')
    k('s_cmp_ge_u32 s2, 1152'); k('s_cbranch_scc1 %s' % END)
    k('s_load_dwordx2 s[16:17], s[0:1], 0')
    k('s_load_dwordx2 s[18:19], s[0:1], 64')
    k('s_load_dwordx2 s[20:21], s[0:1], 104')
    k('s_load_dwordx2 s[32:33], s[0:1], 120')
    k('v_lshrrev_b32 v1, 6, v0'); k('v_and_b32 v2, 63, v0')
    k('v_readfirstlane_b32 s4, v1')
    k('s_lshl_b32 s5, s2, 2'); k('s_add_u32 s5, s5, s4')
    k('s_mul_i32 s6, s5, 58255'); k('s_lshr_b32 s6, s6, 22')
    k('s_mul_i32 s7, s6, 72'); k('s_sub_u32 s7, s5, s7')
    k('s_lshr_b32 s8, s7, 1'); k('s_and_b32 s9, s7, 1')
    k('v_and_b32 v3, 15, v0'); k('v_bfe_u32 v4, v0, 4, 2')
    k('s_lshl_b32 s10, s6, 5'); k('s_lshl_b32 s11, s9, 4'); k('s_add_u32 s10, s10, s11')
    k('v_add_u32 v5, s10, v3')
    k('s_lshl_b32 s11, s8, 4')
    k('v_lshl_add_u32 v6, v4, 2, s11')
    k('v_mul_u32_u24 v7, 576, v5'); k('v_add_u32 v7, v7, v6')
    k('v_lshlrev_b32 v8, 1, v7'); k('v_lshlrev_b32 v9, 2, v7'); k('v_lshlrev_b32 v10, 1, v6')
    k('v_lshrrev_b32 v11, 6, v5'); k('v_mul_u32_u24 v11, 73728, v11')
    k('v_bfe_u32 v12, v5, 5, 1'); k('v_lshl_add_u32 v11, v12, 10, v11')
    k('v_and_b32 v12, 31, v5'); k('v_lshl_add_u32 v11, v12, 4, v11')
    k('v_lshrrev_b32 v12, 4, v6'); k('v_lshl_add_u32 v11, v12, 11, v11')
    k('v_bfe_u32 v12, v6, 3, 1'); k('v_lshl_add_u32 v11, v12, 9, v11')
    k('v_and_b32 v12, 7, v6'); k('v_lshl_add_u32 v11, v12, 1, v11')
    k('v_lshlrev_b32 v13, 4, v2')
    k('s_lshl_b32 s12, s5, 10')
    k('s_waitcnt lgkmcnt(0)')
    srd(k, 36, 16, 2048 * 1152); srd(k, 40, 18, 1152); srd(k, 44, 20, 2048 * 576 * 4)
    srd(k, 48, 32, SZ_XN, WS_XN); srd(k, 52, 32, SZ_P, WS_P)
    for q in range(4):
        if q: k('s_add_u32 s12, s12, %d' % (2048 * 576 * 4))
        k('buffer_load_dwordx4 %s, v13, s[52:55], s12 offen' % vr(16 + 4 * q, 4))
    k('buffer_load_dwordx2 v[32:33], v8, s[36:39], 0 offen')
    k('buffer_load_dwordx2 v[34:35], v11, s[48:51], 0 offen')
    k('buffer_load_dwordx2 v[36:37], v10, s[40:43], 0 offen')
    k('s_mov_b32 s13, 0xffff0000')
    k('s_waitcnt vmcnt(0)')
    for b, d in ((32, 40), (34, 44), (36, 48)):
        for i in range(2):
            k('v_lshlrev_b32 v%d, 16, v%d' % (d + 2 * i, b + i)); k('v_and_b32 v%d, s13, v%d' % (d + 2 * i + 1, b + i))
    k('v_pk_mul_f32 v[44:45], v[44:45], v[48:49]'); k('v_pk_mul_f32 v[46:47], v[46:47], v[50:51]')
    k('v_cvt_pk_bf16_f32 v34, v44, v45'); k('v_cvt_pk_bf16_f32 v35, v46, v47')
    for i in range(2):
        k('v_lshlrev_b32 v%d, 16, v%d' % (44 + 2 * i, 34 + i)); k('v_and_b32 v%d, s13, v%d' % (44 + 2 * i + 1, 34 + i))
    for h in (0, 2):
        k('v_pk_add_f32 v[%d:%d], v[%d:%d], v[%d:%d]' % (16 + h, 17 + h, 16 + h, 17 + h, 20 + h, 21 + h))
        k('v_pk_add_f32 v[%d:%d], v[%d:%d], v[%d:%d]' % (24 + h, 25 + h, 24 + h, 25 + h, 28 + h, 29 + h))
        k('v_pk_add_f32 v[%d:%d], v[%d:%d], v[%d:%d]' % (40 + h, 41 + h, 40 + h, 41 + h, 44 + h, 45 + h))
        k('v_pk_add_f32 v[%d:%d], v[%d:%d], v[%d:%d]' % (16 + h, 17 + h, 16 + h, 17 + h, 24 + h, 25 + h))
        k('v_pk_add_f32 v[%d:%d], v[%d:%d], v[%d:%d]' % (16 + h, 17 + h, 16 + h, 17 + h, 40 + h, 41 + h))
    k('buffer_store_dwordx4 v[16:19], v9, s[44:47], 0 offen')
    k.label(END)
    k('s_endpgm')
    return k, desc(k.name, 56, 56, 64), (1152, 256, 0)

def build(kernels, path, verbose=False):
    head = open('cdna_kernels/%s.s.ref' % NAME).read().split('\n')
    hdr = [l for l in head if l.startswith(';') and '@launch' not in l and 'Override' not in l and 'grid=ceil' not in l]
    out = hdr[:]
    for k, d, (g, b, lds) in kernels:
        out.append('; @launch kernel=%s grid=(%d,1,1) block=(%d,1,1) lds=%d' % (k.name, g, b, lds))
    out.append('.amdgcn_target "amdgcn-amd-amdhsa--gfx950"')
    out.append('.text')
    seen = set()
    for k, d, _ in kernels:
        if k.name in seen: continue
        seen.add(k.name)
        t, n = hz.fix(k.text(), verbose)
        print(k.name, 'instrs', len(k.L), 'nops inserted', n)
        out.append('.globl %s' % k.name)
        out.append(t)
    out.append('.section .rodata,"a"')
    seen = set()
    for k, d, _ in kernels:
        if k.name in seen: continue
        seen.add(k.name); out.append(d)
    open(path, 'w').write('\n'.join(out) + '\n')

if __name__ == '__main__':
    if '-t' in sys.argv: STAMP = True
    if '-emu' in sys.argv: EMU_GU = True
    ks = [gen_k0(), gen_k1(), gen_k2(), gen_k3()]
    build(ks, sys.argv[1] if len(sys.argv) > 1 else 'out.s', verbose='-v' in sys.argv)
```

```python
import sys
import gen as G
from gen import *
def empty(name='e0_kernel'):
    k = K(name); header(k); k('s_endpgm')
    return k, desc(k.name, 8, 8, 16), (256, 256, 0)
base = [gen_k0(), gen_k1(), gen_k2(), gen_k3()]
e = empty()
build(base, 'v0.s'); build(base + [e], 'v1.s'); build(base + [e] * 4, 'v4.s'); build([e] * 4 + base, 'v4b.s')
G.EMU_GU = True
build([gen_k0(), gen_k1(), gen_k2(), gen_k3()], 'vemu.s')
```

```python
import sys, os
sys.path.insert(0, os.path.dirname(os.path.abspath(__file__)))
import gen as G
from gen import K, vr, ar, sr, srd, lam_params, csq, cmul, header, desc, Sim, stamp, stamp_end, build, DPP8

WS_XN = 0x0000000;  SZ_XN = 2048 * 576 * 2
WS_H  = 0x0300000;  SZ_H = 64 * 180 * 2048
WS_CT = 0x1A00000;  SZ_CT = 1152 * 1152
WS_R  = 0x1C00000;  SZ_R = 2048 * 576 * 4
WS_E  = 0x2200000;  SZ_E = 72 * 16 * 64 * 4
WS_FL = 0x2300000;  SZ_FL = 48 * 2 * 4 * 32
WS_EX = 0x2400000;  SZ_EX = 48 * 4 * 4 * 4 * 6 * 1024
SPIN = 1 << 16

def dpp(s): return '%s row_mask:0xf bank_mask:0xf' % s

def gen_k0():
    k = K('k0_kernel'); header(k)
    END = k.newlabel('end')
    k('s_cmp_ge_u32 s2, 256'); k('s_cbranch_scc1 %s' % END)
    k('s_load_dwordx2 s[16:17], s[0:1], 0')
    k('s_load_dwordx2 s[18:19], s[0:1], 64')
    k('s_load_dwordx4 s[20:23], s[0:1], 80')
    k('s_load_dwordx4 s[24:27], s[0:1], 24')
    k('s_load_dwordx2 s[32:33], s[0:1], 120')
    k('v_lshrrev_b32 v1, 6, v0'); k('v_and_b32 v2, 63, v0'); k('v_readfirstlane_b32 s4, v1')
    stamp(k, 0, real=True); stamp(k, 1)
    k('v_and_b32 v3, 31, v0')
    k('v_lshrrev_b32 v4, 5, v0')
    k('s_and_b32 s5, s2, 7'); k('s_lshr_b32 s6, s2, 3')
    k('s_lshr_b32 s7, s5, 1')
    k('s_and_b32 s8, s2, 1'); k('s_lshl_b32 s8, s8, 3')
    k('v_add_u32 v5, s8, v4')
    k('v_lshrrev_b32 v6, 2, v5'); k('v_lshlrev_b32 v6, 4, v6'); k('v_and_b32 v7, 3, v5'); k('v_add_u32 v6, v6, v7')
    k('s_lshl_b32 s9, s7, 2'); k('s_lshl_b32 s10, s6, 6'); k('s_add_u32 s9, s9, s10')
    k('v_add_u32 v6, s9, v6')
    k('v_cmp_gt_u32 vcc, 24, v3')
    k('v_mov_b32 v9, 0x7f000000')
    k('v_mul_u32_u24 v7, 1152, v6'); k('v_lshl_add_u32 v7, v3, 4, v7'); k('v_cndmask_b32 v7, v9, v7, vcc')
    k('v_lshlrev_b32 v8, 4, v3'); k('v_cndmask_b32 v8, v9, v8, vcc')
    k('v_mul_u32_u24 v10, 2304, v6'); k('v_lshl_add_u32 v10, v3, 5, v10'); k('v_cndmask_b32 v10, v9, v10, vcc')
    k('v_lshrrev_b32 v11, 2, v3'); k('v_lshlrev_b32 v11, 12, v11'); k('v_and_b32 v12, 3, v3'); k('v_lshl_add_u32 v11, v12, 8, v11')
    k('v_lshl_add_u32 v11, v5, 4, v11'); k('v_cndmask_b32 v11, v9, v11, vcc')
    k('s_mul_i32 s11, s6, 73728'); k('s_lshl_b32 s12, s7, 10'); k('s_add_u32 s11, s11, s12')
    k('v_cndmask_b32 v13, 0, 1.0, vcc')
    k('s_waitcnt lgkmcnt(0)')
    srd(k, 36, 16, 2048 * 1152); srd(k, 40, 18, 1152)
    X = 16; D = 28; F = 40; DF = 64
    for n in range(3): k('buffer_load_dwordx4 %s, v7, s[36:39], 0 offen offset:%d' % (vr(X + 4 * n, 4), 384 * n))
    for n in range(3): k('buffer_load_dwordx4 %s, v8, s[40:43], 0 offen offset:%d' % (vr(D + 4 * n, 4), 384 * n))
    k('s_mul_i32 s13, s6, 216'); k('s_mul_i32 s14, s4, 54'); k('s_add_u32 s13, s13, s14')
    k('s_cmp_ge_u32 s13, 3456'); k('s_cselect_b32 s44, s22, s20'); k('s_cselect_b32 s45, s23, s21'); k('s_cselect_b32 s14, 3456, 0')
    k('s_sub_u32 s13, s13, s14'); k('s_mov_b32 s46, %d' % (576 * 9216)); k('s_mov_b32 s47, 0x20000')
    k('v_add_u32 v14, s13, v2')
    k('v_mul_u32_u24 v15, 43691, v14'); k('v_lshrrev_b32 v15, 18, v15')
    k('v_mul_u32_u24 v88, 6, v15'); k('v_sub_u32 v88, v14, v88')
    k('v_mul_u32_u24 v15, 9216, v15'); k('v_mul_u32_u24 v88, 384, v88'); k('v_add_u32 v15, v15, v88')
    k('s_bfe_u32 s14, s2, 0x20001'); k('s_mul_i32 s14, s14, 2304')
    k('v_cmp_gt_u32 s[48:49], 54, v2'); k('v_cndmask_b32 v15, v9, v15, s[48:49]')
    k('buffer_load_dword v89, v15, s[44:47], s14 offen')
    srd(k, 48, 32, SZ_XN, WS_XN); srd(k, 52, 32, SZ_R, WS_R); srd(k, 56, 32, SZ_FL, WS_FL)
    k('s_lshl_b32 s14, s2, 10'); k('v_lshlrev_b32 v90, 2, v0'); k('v_mov_b32 v91, 0')
    k('buffer_store_dword v91, v90, s[56:59], s14 offen')
    k('s_mov_b32 s12, 0xffff0000')
    k('s_waitcnt vmcnt(5)')
    stamp(k, 2)
    for i in range(12):
        k('v_lshlrev_b32 v%d, 16, v%d' % (F + 2 * i, X + i)); k('v_and_b32 v%d, s12, v%d' % (F + 2 * i + 1, X + i))
    k('v_pk_add_f32 v[92:93], v[%d:%d], v[%d:%d]' % (F, F + 1, F + 2, F + 3))
    k('v_pk_add_f32 v[94:95], v[%d:%d], v[%d:%d]' % (F + 4, F + 5, F + 6, F + 7))
    for i in range(4, 12):
        d = 92 if i % 2 == 0 else 94
        k('v_pk_add_f32 v[%d:%d], v[%d:%d], v[%d:%d]' % (d, d + 1, d, d + 1, F + 2 * i, F + 2 * i + 1))
    k('v_pk_add_f32 v[92:93], v[92:93], v[94:95]'); k('v_add_f32 v92, v92, v93')
    def red32(r, t):
        for n in (8, 4, 2, 1): k('v_add_f32_dpp v%d, v%d, v%d %s' % (r, r, r, dpp('row_ror:%d' % n)))
        k('v_mov_b32 v%d, v%d' % (t, r)); k('v_permlane16_swap_b32 v%d, v%d' % (r, t)); k('v_add_f32 v%d, v%d, v%d' % (r, r, t))
    red32(92, 93)
    k('v_mul_f32 v92, 0x3ae38e39, v92')
    k('v_cvt_pk_bf16_f32 v93, v92, v92'); k('v_lshlrev_b32 v96, 16, v93')
    k('v_sub_f32 v98, v92, v96')
    for i in range(12):
        k('v_pk_add_f32 v[%d:%d], v[%d:%d], v[96:97] op_sel_hi:[1,0] neg_lo:[0,1] neg_hi:[0,1]' % (DF + 2 * i, DF + 2 * i + 1, F + 2 * i, F + 2 * i + 1))
    k('v_pk_mul_f32 v[92:93], v[%d:%d], v[%d:%d]' % (DF, DF + 1, DF, DF + 1))
    k('v_pk_mul_f32 v[94:95], v[%d:%d], v[%d:%d]' % (DF + 2, DF + 3, DF + 2, DF + 3))
    for i in range(2, 12):
        d = 92 if i % 2 == 0 else 94
        k('v_pk_fma_f32 v[%d:%d], v[%d:%d], v[%d:%d], v[%d:%d]' % (d, d + 1, DF + 2 * i, DF + 2 * i + 1, DF + 2 * i, DF + 2 * i + 1, d, d + 1))
    k('v_pk_add_f32 v[92:93], v[92:93], v[94:95]'); k('v_add_f32 v92, v92, v93')
    k('v_mul_f32 v92, v92, v13')
    red32(92, 93)
    k('v_mul_f32 v92, 0x3ae38e39, v92')
    k('v_fma_f32 v92, -v98, v98, v92'); k('v_max_f32 v92, 0, v92')
    k('v_cvt_pk_bf16_f32 v92, v92, v92'); k('v_lshlrev_b32 v92, 16, v92')
    k('v_add_f32 v92, 0x3727c5ac, v92')
    k('v_cvt_pk_bf16_f32 v92, v92, v92'); k('v_lshlrev_b32 v92, 16, v92')
    k('v_sqrt_f32 v92, v92')
    k('v_cvt_pk_bf16_f32 v92, v92, v92'); k('v_lshlrev_b32 v92, 16, v92')
    k('v_rcp_f32 v92, v92')
    for i in range(12): k('v_cvt_pk_bf16_f32 v%d, v%d, v%d' % (X + i, DF + 2 * i, DF + 2 * i + 1))
    for i in range(12):
        k('v_lshlrev_b32 v%d, 16, v%d' % (DF + 2 * i, X + i)); k('v_and_b32 v%d, s12, v%d' % (DF + 2 * i + 1, X + i))
    for i in range(12):
        k('v_pk_mul_f32 v[%d:%d], v[%d:%d], v[92:93] op_sel_hi:[1,0]' % (DF + 2 * i, DF + 2 * i + 1, DF + 2 * i, DF + 2 * i + 1))
    for i in range(12): k('v_cvt_pk_bf16_f32 v%d, v%d, v%d' % (X + i, DF + 2 * i, DF + 2 * i + 1))
    for n in range(3):
        if n: k('s_add_u32 s11, s11, %d' % (6 * 4096))
        k('buffer_store_dwordx4 %s, v11, s[48:51], s11 offen' % vr(X + 4 * n, 4))
    k('s_waitcnt vmcnt(5)')
    for i in range(12):
        k('v_lshlrev_b32 v%d, 16, v%d' % (DF + 2 * i, X + i)); k('v_and_b32 v%d, s12, v%d' % (DF + 2 * i + 1, X + i))
        k('v_lshlrev_b32 v92, 16, v%d' % (D + i)); k('v_and_b32 v93, s12, v%d' % (D + i))
        k('v_pk_mul_f32 v[92:93], v[92:93], v[%d:%d]' % (DF + 2 * i, DF + 2 * i + 1))
        k('v_cvt_pk_bf16_f32 v94, v92, v93')
        k('v_lshlrev_b32 v92, 16, v94'); k('v_and_b32 v93, s12, v94')
        k('v_pk_add_f32 v[%d:%d], v[%d:%d], v[92:93]' % (F + 2 * i, F + 2 * i + 1, F + 2 * i, F + 2 * i + 1))
    for n in range(3):
        for h in range(2):
            k('buffer_store_dwordx4 %s, v10, s[52:55], 0 offen offset:%d' % (vr(F + 8 * n + 4 * h, 4), 768 * n + 16 * h))
    stamp(k, 3)
    if G.STAMP: k('s_waitcnt vmcnt(0)')
    stamp_end(k, 0)
    k.label(END)
    k('s_endpgm')
    return k, desc(k.name, 104, 104), (256, 256, 0)

def sched(S, mf, streams):
    fill = {}
    for start, rate, th in streams:
        g = float(start)
        for t in th:
            gi = min(int(g), len(mf) - 1)
            fill.setdefault(gi, []).append(t); g += 1.0 / rate
    for i, m in enumerate(mf):
        m()
        for f in fill.get(i, []): f()

def gen_k1(NS=9, LEAD=3):
    k = K('k1_kernel'); header(k)
    END = k.newlabel('end'); SSM = k.newlabel('ssm')
    k('s_cmp_ge_u32 s2, 256'); k('s_cbranch_scc1 %s' % END)
    k('s_load_dwordx2 s[32:33], s[0:1], 120')
    k('s_load_dwordx4 s[16:19], s[0:1], 80')
    k('v_lshrrev_b32 v1, 6, v0'); k('v_and_b32 v2, 63, v0'); k('v_readfirstlane_b32 s4, v1')
    stamp(k, 0, real=True); stamp(k, 1)
    k('v_and_b32 v3, 15, v0'); k('v_bfe_u32 v4, v0, 4, 2')
    k('s_and_b32 s5, s2, 1'); k('s_bfe_u32 s6, s2, 0x20001'); k('s_lshr_b32 s7, s2, 3')
    k('v_lshlrev_b32 v5, 4, v2')
    k('s_cmp_ge_u32 s7, 24'); k('s_cbranch_scc1 %s' % SSM)
    k('s_and_b32 s8, s7, 3'); k('s_lshl_b32 s9, s5, 2'); k('s_add_u32 s8, s8, s9')
    k('s_lshr_b32 s9, s7, 2'); k('s_mul_i32 s10, s6, 6'); k('s_add_u32 s10, s10, s9')
    k('v_lshrrev_b32 v6, 3, v2'); k('v_and_b32 v7, 7, v2')
    k('v_and_b32 v12, 2, v6'); k('v_xor_b32 v7, v7, v12')
    k('v_mul_u32_u24 v6, 9216, v6')
    k('v_lshl_add_u32 v8, v7, 4, v6')
    k('v_xor_b32 v7, 4, v7'); k('v_lshl_add_u32 v9, v7, 4, v6')
    k('v_add_u32 v9, %d, v9' % (8 * 9216 - 1024))
    k('v_add_u32 v10, %d, v8' % (16 * 9216 - 2048)); k('v_add_u32 v11, %d, v9' % (16 * 9216 - 2048))
    k('v_bfe_u32 v6, v0, 2, 2'); k('v_lshl_add_u32 v7, v4, 3, v6'); k('v_lshlrev_b32 v7, 7, v7')
    k('v_and_b32 v24, 3, v0'); k('v_lshl_add_u32 v7, v24, 3, v7')
    k('v_lshrrev_b32 v6, 1, v6'); k('v_and_b32 v24, 1, v4'); k('v_lshl_add_u32 v6, v24, 1, v6')
    for t in range(4):
        k('v_xor_b32 v24, %d, v6' % t); k('v_lshl_add_u32 v%d, v24, 5, v7' % (12 + t))
        k('v_add_u32 v%d, 0x10000, v%d' % (16 + t, 12 + t)); k('v_add_u32 v%d, 0x20000, v%d' % (20 + t, 12 + t))
    k('v_lshlrev_b32 v25, 9, v4'); k('v_lshl_add_u32 v25, v3, 4, v25')
    k('s_waitcnt lgkmcnt(0)')
    k('s_cmp_ge_u32 s4, 2'); k('s_cselect_b32 s26, s18, s16'); k('s_cselect_b32 s27, s19, s17')
    k('s_and_b32 s13, s4, 1'); k('s_mul_i32 s14, s13, %d' % (32 * 9216)); k('s_mul_i32 s15, s10, 384'); k('s_add_u32 s14, s14, s15')
    k('s_sub_u32 s15, %d, s14' % (576 * 9216))
    srd(k, 36, 26, 's15', 0, 's14')
    k('s_lshl_b32 s28, s4, 12')
    k('s_lshl_b32 s13, s8, 2'); k('s_add_u32 s13, s13, s4')
    k('s_mul_i32 s14, s13, 73728')
    srd(k, 40, 32, 73728, WS_XN, 's14')
    k('s_mul_i32 s14, s13, 360'); k('s_mul_i32 s15, s10, 6'); k('s_add_u32 s14, s14, s15'); k('s_lshl_b32 s14, s14, 11')
    srd(k, 44, 32, 186 * 2048, WS_H, 's14')
    k('s_mov_b32 s29, %d' % (180 * 2048))
    ACC = 96; WR = 64; NW = 8; STG = 32
    def xr(s, m):
        i = 4 * s + m
        return ar(4 * i, 4) if i < 64 else vr(224 + 4 * (i - 64), 4)
    acc = lambda tt, m: ACC + 16 * tt + 4 * m
    S = Sim(k)
    def program():
        S.reset(); o = S.out
        def dma(J):
            p, j = divmod(J, 9)
            th = [lambda: (o('s_add_u32 m0, s28, %d' % ((J % NS) * 16384)), o('s_mov_b32 s30, %d' % (j * 64 * 9216 + p * 128)))]
            for i in range(4):
                th.append(lambda i=i: S.op('vm', ('W', J), 'buffer_load_dwordx4 v%d, s[36:39], s30 offen offset:%d lds' % (8 + i, 1024 * i)))
            return th
        def xld(s):
            th = [lambda: o('s_mov_b32 s31, %d' % (s * 4096))]
            for m in range(4):
                th.append(lambda m=m: S.op('vm', ('X', s), 'buffer_load_dwordx4 %s, v5, s[40:43], s31 offen offset:%d' % (xr(s, m), 1024 * m)))
            return th
        uses = []
        for p in range(3):
            for s in range(14):
                for t in range(4): uses += [(p, s, t), (p, s, t + 4)]
            for t in range(4):
                for s in range(14, 18): uses += [(p, s, t), (p, s, t + 4)]
        NU = len(uses)
        AHEAD = NW - 2
        def rd(u):
            p, s, tt = uses[u]
            J = 9 * p + (s >> 1); slot = J % NS
            base = 12 + 4 * (slot // 4) + (tt & 3)
            off = (slot % 4) * 16384 + (tt >> 2) * 8192 + (s & 1) * 4096
            r = WR + 4 * (u % NW)
            return [lambda h=h: S.op('lg', ('R', u), 'ds_read_b64_tr_b16 %s, v%d offset:%d' % (vr(r + 2 * h, 2), base, off + 512 * h)) for h in range(2)]
        slab_of = lambda u: 9 * uses[u][0] + (uses[u][1] >> 1)
        first_use = {}; last_use = {}
        for u in range(NU):
            first_use.setdefault(slab_of(u), u); last_use[slab_of(u)] = u
        vq = []
        for J in range(LEAD):
            for t in dma(J): t()
            for s in (2 * J, 2 * J + 1):
                for t in xld(s): t()
        nextW = LEAD; nextX = 2 * LEAD
        barriered = set()
        def barrier_for(J):
            S.wait(('b', J), vm=[('W', J)]); o('s_barrier'); barriered.add(J)
        stamp(k, 2, emit=S.emit)
        barrier_for(0)
        stamp(k, 3, emit=S.emit)
        for u in range(AHEAD):
            if slab_of(u) not in barriered: barrier_for(slab_of(u))
            for t in rd(u): t()
        pend = []
        epi = []
        done_upto = -1
        def epilogue(p, t):
            th = []
            for m in range(4):
                g, uu = acc(t, m), acc(t + 4, m)
                st = STG + 16 * ((t >> 1) & 1) + 4 * m + 2 * (t & 1)
                for r in range(4): th.append(lambda g=g, uu=uu, r=r: o('v_mul_f32 v%d, v%d, v%d' % (g + r, g + r, uu + r)))
                for r in range(2): th.append(lambda g=g, st=st, r=r: o('v_cvt_pk_bf16_f32 v%d, v%d, v%d' % (st + r, g + 2 * r, g + 2 * r + 1)))
            if t & 1:
                blk = 2 * p + (t >> 1)
                for m in range(4):
                    st = STG + 16 * ((t >> 1) & 1) + 4 * m
                    if m % 2 == 0: th.append(lambda m=m: o('s_mov_b32 s34, %d' % (blk * 2048 + (m >> 1) * 180 * 2048)))
                    th.append(lambda m=m, st=st: S.op('vm', ('HS', p, t), 'buffer_store_dwordx4 %s, v25, s[44:47], s34 offen offset:%d' % (vr(st, 4), 256 * (m & 1))))
            return th
        xw = set()
        for u in range(NU):
            p, s, tt = uses[u]
            ua = u + AHEAD
            if ua < NU and slab_of(ua) not in barriered:
                barrier_for(slab_of(ua))
                while nextW < 27 and (nextW - NS < 0 or last_use[nextW - NS] < u) and (nextX >= 18 or nextW <= slab_of(ua) + LEAD - 1):
                    pend += dma(nextW); nextW += 1
                    if nextX < 18:
                        pend += xld(nextX) + xld(nextX + 1); nextX += 2
                    if nextW > slab_of(ua) + LEAD + 1 and len(pend) > 12: break
            vm = None
            if p == 0 and s not in xw: vm = [('X', s)]; xw.add(s)
            S.wait(('u', u), vm=vm, lg=[('R', u)])
            fills = [[], [], [], []]
            if ua < NU:
                r = rd(ua); fills[0].append(r[0]); fills[1].append(r[1])
            for g in (2, 3):
                if pend: fills[g].append(pend.pop(0))
            for g in range(4):
                for _ in range(1 if g < 2 or fills[g] else 2):
                    if epi: fills[g].append(epi.pop(0))
            for m in range(4):
                a = vr(acc(tt, m), 4)
                o('v_mfma_f32_16x16x32_bf16 %s, %s, %s, %s' % (a, vr(WR + 4 * (u % NW), 4), xr(s, m), '0' if s == 0 else a))
                for f in fills[m]: f()
            if s == 17 and tt >= 4:
                assert not epi or True
                epi += epilogue(p, tt - 4)
                if tt == 7: stamp(k, 4 + p, emit=S.emit)
            if s == 0 and p > 0 and tt == 2:
                while epi: epi.pop(0)()
        while epi: epi.pop(0)()
        assert not pend and nextW == 27
    S.emit = False; program()
    S.emit = True; program()
    stamp(k, 10)
    if G.STAMP: k('s_waitcnt vmcnt(0)')
    stamp_end(k, 1)
    k('s_endpgm')
    k.label(SSM)
    gen_ssm(k)
    k.label(END)
    k('s_endpgm')
    return k, desc(k.name, 512, 256), (256, 256, 160 * 1024)

def gen_ssm(k):
    k('s_load_dwordx16 s[64:79], s[0:1], 0')
    k('s_load_dwordx2 s[34:35], s[0:1], 112')
    k('s_sub_u32 s8, s7, 24')
    k('s_lshl_b32 s9, s5, 2'); k('s_add_u32 s9, s9, s6')
    k('s_lshl_b32 s10, s9, 2'); k('s_add_u32 s10, s10, s4')
    BSL = 20480
    k('v_lshrrev_b32 v6, 3, v2'); k('v_and_b32 v7, 7, v2')
    k('v_lshrrev_b32 v8, 1, v6')
    k('s_lshr_b32 s11, s4, 1'); k('s_lshl_b32 s12, s11, 2'); k('v_or_b32 v8, s12, v8'); k('v_xor_b32 v7, v7, v8')
    k('s_and_b32 s12, s4, 1'); k('s_mul_i32 s13, s12, 40')
    k('v_add_u32 v6, s13, v6'); k('v_mul_u32_u24 v6, 1152, v6'); k('v_lshl_add_u32 v8, v7, 4, v6')
    for n in range(1, 5):
        k('v_add_u32 v%d, %d, v8' % (8 + n, n * 8 * 1152 - (n % 4) * 1024))
    k('v_and_b32 v6, 7, v2'); k('v_bfe_u32 v7, v2, 3, 1')
    k('v_lshrrev_b32 v13, 1, v6'); k('v_lshl_add_u32 v13, v7, 2, v13'); k('v_xor_b32 v13, v13, v4')
    k('v_mul_u32_u24 v7, 10240, v7'); k('v_lshl_add_u32 v7, v6, 7, v7')
    k('v_lshl_add_u32 v14, v13, 4, v7'); k('v_xor_b32 v13, 4, v13'); k('v_lshl_add_u32 v15, v13, 4, v7')
    k('v_add_u32 v16, %d, v14' % (3 * BSL)); k('v_add_u32 v17, %d, v15' % (3 * BSL))
    k('s_waitcnt lgkmcnt(0)')
    k('s_cmp_ge_u32 s4, 2'); k('s_cselect_b32 s26, s72, s70'); k('s_cselect_b32 s27, s73, s71')
    k('s_mul_i32 s14, s8, %d' % (72 * 1152))
    srd(k, 36, 26, 72 * 1152, 0, 's14')
    k('s_mul_i32 s28, s11, 10240'); k('s_mul_i32 s13, s12, 5120'); k('s_add_u32 s28, s28, s13')
    k('s_mul_i32 s14, s10, 73728')
    srd(k, 40, 32, 73728, WS_XN, 's14')
    srd(k, 44, 32, SZ_H, WS_H); srd(k, 48, 32, SZ_E, WS_E); srd(k, 52, 34, 256)
    srd(k, 56, 66, 1152); srd(k, 60, 68, 1152); srd(k, 80, 78, 1152)
    NSB = 6
    ACC = 112
    BF = 40
    PR = 18
    S = Sim(k)
    def program():
        S.reset(); o = S.out
        def dma(J):
            o('s_add_u32 m0, s28, %d' % ((J % NSB) * BSL)); o('s_mov_b32 s30, %d' % (J * 128))
            for n in range(5):
                if n == 4: o('s_add_u32 m0, s28, %d' % ((J % NSB) * BSL + 4096))
                S.op('vm', ('W', J), 'buffer_load_dwordx4 v%d, s[36:39], s30 offen offset:%d lds' % (8 + n, 1024 * (n % 4)))
        def xld(s):
            o('s_mov_b32 s31, %d' % (s * 4096))
            for m in range(4):
                S.op('vm', ('X', s), 'buffer_load_dwordx4 %s, v5, s[40:43], s31 offen offset:%d' % (ar(16 * (s % 16) + 4 * m, 4), 1024 * m))
        def rd(s, t):
            J = s >> 1; slot = J % NSB
            base = 14 + (s & 1) + 2 * (slot // 3)
            S.op('lg', ('R', s), 'ds_read_b128 %s, v%d offset:%d' % (vr(BF + 36 * (s & 1) + 4 * t, 4), base, (slot % 3) * BSL + t * 1024))
        for J in range(3):
            dma(J); xld(2 * J); xld(2 * J + 1)
        S.wait('b0', vm=[('W', 0)]); o('s_barrier')
        for t in range(9): rd(0, t)
        for s in range(18):
            J = s >> 1
            if s & 1 and J + 1 < 9:
                S.wait(('b', s), vm=[('W', J + 1), ('X', s)], lg=[('R', s)]); o('s_barrier')
            else:
                S.wait(('b', s), vm=[('X', s)], lg=[('R', s)])
            for t in range(9):
                for m in range(4):
                    a = vr(ACC + 16 * t + 4 * m, 4)
                    o('v_mfma_f32_16x16x32_bf16 %s, %s, %s, %s' % (a, ar(16 * (s % 16) + 4 * m, 4), vr(BF + 36 * (s & 1) + 4 * t, 4), '0' if s == 0 else a))
                if s + 1 < 18: rd(s + 1, t)
                if t == 2 and s & 1 and J + 3 < 9: dma(J + 3)
                if t == 5 and s + 6 < 18: xld(s + 6)
    S.emit = False; program()
    S.emit = True; program()
    stamp(k, 2)
    k('v_and_b32 v6, 8, v0'); k('v_cmp_ne_u32 s[84:85], 0, v6')
    k('v_cmp_eq_u32 s[86:87], 1, v4'); k('v_cmp_eq_u32 s[88:89], 2, v4'); k('v_cmp_eq_u32 s[90:91], 3, v4')
    k('s_mul_i32 s14, s8, 144'); k('v_and_b32 v6, 7, v0'); k('v_lshlrev_b32 v6, 1, v6'); k('v_add_u32 v6, s14, v6')
    for t in range(9):
        k('buffer_load_ushort v%d, v6, s[56:59], 0 offen offset:%d' % (18 + t, 16 * t))
        k('buffer_load_ushort v%d, v6, s[60:63], 0 offen offset:%d' % (27 + t, 16 * t))
        k('buffer_load_ushort v%d, v6, s[80:83], 0 offen offset:%d' % (36 + t, 16 * t))
    k('s_mul_i32 s15, s8, 9'); k('s_lshl_b32 s15, s15, 12'); k('s_lshl_b32 s14, s10, 2'); k('s_add_u32 s15, s15, s14')
    k('v_lshlrev_b32 v7, 8, v3')
    k('v_lshlrev_b32 v8, 5, v4'); k('v_sub_u32 v8, v7, v8'); k('v_add_u32 v8, 96, v8')
    k('v_mov_b32 v9, 0')
    k('s_barrier')
    k('s_mul_i32 s13, s4, 4096')
    k('v_lshlrev_b32 v10, 2, v2'); k('v_add_u32 v10, s13, v10')
    k('v_lshlrev_b32 v11, 2, v3'); k('v_add_u32 v11, s13, v11')
    k('s_waitcnt vmcnt(0)')
    TB = 46
    for g3 in range(3):
        N3 = range(3)
        T_ = lambda n, i: TB + 22 * n + i
        tl = lambda n: 3 * g3 + n
        U = lambda n: ACC + 16 * tl(n)
        for n in N3: lam_params(k, 18 + tl(n), 27 + tl(n), 36 + tl(n), T_(n, 0), dict(a=T_(n, 16), b=T_(n, 17), cr=T_(n, 18), ci=T_(n, 19)))
        for n in N3: csq(k, T_(n, 0), T_(n, 1), T_(n, 16), T_(n, 17), T_(n, 14))
        for _ in range(3):
            for n in N3: csq(k, T_(n, 0), T_(n, 1), T_(n, 0), T_(n, 1), T_(n, 14))
        for n in N3: csq(k, T_(n, 2), T_(n, 3), T_(n, 0), T_(n, 1), T_(n, 14))
        for n in N3: cmul(k, T_(n, 4), T_(n, 5), T_(n, 0), T_(n, 1), T_(n, 2), T_(n, 3))
        for n in N3: csq(k, T_(n, 6), T_(n, 7), T_(n, 2), T_(n, 3), T_(n, 14))
        for n in N3: csq(k, T_(n, 8), T_(n, 9), T_(n, 6), T_(n, 7), T_(n, 14))
        for _ in range(2):
            for n in N3: csq(k, T_(n, 8), T_(n, 9), T_(n, 8), T_(n, 9), T_(n, 14))
        for n in N3: csq(k, T_(n, 10), T_(n, 11), T_(n, 8), T_(n, 9), T_(n, 14))
        for n in N3: cmul(k, T_(n, 12), T_(n, 13), T_(n, 8), T_(n, 9), T_(n, 10), T_(n, 11))
        for n in N3:
            k('v_mov_b32 v%d, v%d' % (T_(n, 14), T_(n, 0))); k('v_cndmask_b32 v%d, -v%d, v%d, s[84:85]' % (T_(n, 15), T_(n, 1), T_(n, 1)))
            for b0 in (0, 8):
                k('v_cndmask_b32 v%d, 1.0, v%d, s[86:87]' % (T_(n, b0), T_(n, b0)))
                k('v_cndmask_b32 v%d, 0, v%d, s[86:87]' % (T_(n, b0 + 1), T_(n, b0 + 1)))
                for c in range(2):
                    k('v_cndmask_b32 v%d, v%d, v%d, s[88:89]' % (T_(n, b0 + c), T_(n, b0 + c), T_(n, b0 + 2 + c)))
                    k('v_cndmask_b32 v%d, v%d, v%d, s[90:91]' % (T_(n, b0 + c), T_(n, b0 + c), T_(n, b0 + 4 + c)))
            for r in (T_(n, 17), T_(n, 1), T_(n, 7), T_(n, 9)):
                k('v_cndmask_b32 v%d, -v%d, v%d, s[84:85]' % (r, r, r))
            k('v_add_f32 v%d, v%d, v%d' % (T_(n, 18), T_(n, 18), T_(n, 18)))
            k('v_cndmask_b32 v%d, v%d, -v%d, s[84:85]' % (T_(n, 18), T_(n, 18), T_(n, 18)))
            k('v_mul_f32 v%d, -2.0, v%d' % (T_(n, 19), T_(n, 19)))
            for i, r in enumerate((16, 17, 0, 1, 6, 7, 8, 9)):
                k('v_accvgpr_write_b32 a%d, v%d' % (8 * tl(n) + i, T_(n, r)))
        for j in range(16):
            for n in N3: k('v_mul_f32_dpp v%d, v%d, v%d %s' % (T_(n, 2 + (j & 1)), U(n) + j, T_(n, 19), DPP8))
            for n in N3: k('v_fma_f32 v%d, v%d, v%d, v%d' % (U(n) + j, T_(n, 18), U(n) + j, T_(n, 2 + (j & 1))))
        for n in N3: k('v_mov_b32 v%d, v%d' % (T_(n, 20), U(n)))
        for j in range(1, 16):
            a, b = 20 + ((j - 1) & 1), 20 + (j & 1)
            for n in N3: k('v_fma_f32 v%d, v%d, v%d, v%d' % (T_(n, b), T_(n, 16), T_(n, a), U(n) + j))
            for n in N3: k('v_fmac_f32_dpp v%d, v%d, v%d %s' % (T_(n, b), T_(n, a), T_(n, 17), DPP8))
        for n in N3: k('ds_write_b32 v10, v%d offset:%d' % (T_(n, 21), 256 * n))
        for n in N3:
            k('ds_read2_b32 %s, v11 offset0:%d offset1:%d' % (vr(T_(n, 2), 2), 64 * n, 64 * n + 16))
            k('ds_read2_b32 %s, v11 offset0:%d offset1:%d' % (vr(T_(n, 4), 2), 64 * n + 32, 64 * n + 48))
        k('s_waitcnt lgkmcnt(0)')
        for j in range(1, 4):
            for n in N3: k('v_fmac_f32 v%d, v%d, v%d' % (T_(n, 2 + j), T_(n, 14), T_(n, 1 + j)))
            for n in N3: k('v_fmac_f32_dpp v%d, v%d, v%d %s' % (T_(n, 2 + j), T_(n, 1 + j), T_(n, 15), DPP8))
        for n in N3:
            k('s_add_u32 s14, s15, %d' % (tl(n) * 4096))
            k('buffer_store_dword v%d, v7, s[48:51], s14 offen offset:128 sc1' % T_(n, 5))
            k('buffer_store_dword v9, v7, s[48:51], s14 offen sc1')
            k('v_cndmask_b32 v%d, 0, v%d, s[86:87]' % (T_(n, 10), T_(n, 2)))
            k('v_cndmask_b32 v%d, v%d, v%d, s[88:89]' % (T_(n, 10), T_(n, 10), T_(n, 3)))
            k('v_cndmask_b32 v%d, v%d, v%d, s[90:91]' % (T_(n, 10), T_(n, 10), T_(n, 4)))
            k('v_accvgpr_write_b32 a%d, v%d' % (80 + tl(n), T_(n, 10)))
    k('s_waitcnt vmcnt(0)')
    k('s_lshl_b32 s14, s8, 5'); k('s_add_u32 s13, s14, s10')
    k('v_mov_b32 v12, s13'); k('v_mov_b32 v13, 1')
    k('buffer_store_byte v13, v12, s[52:55], 0 offen sc1')
    stamp(k, 3)
    k('s_and_b32 s18, s2, 7'); k('s_lshl_b32 s18, s18, 3'); k('s_add_u32 s18, s18, s8'); k('s_lshl_b32 s18, s18, 2'); k('s_add_u32 s18, s18, s4')
    srd(k, 56, 32, SZ_CT, WS_CT)
    LP = k.newlabel('ct'); k.label(LP)
    k('s_cmp_ge_u32 s18, 648'); k('s_cselect_b32 s19, 1, 0')
    k('s_cselect_b32 s60, s76, s74'); k('s_cselect_b32 s61, s77, s75'); k('s_mov_b32 s62, %d' % (576 * 1152)); k('s_mov_b32 s63, 0x20000')
    k('s_mul_i32 s20, s19, 648'); k('s_sub_u32 s20, s18, s20')
    k('s_mul_i32 s21, s20, 911'); k('s_lshr_b32 s21, s21, 16')
    k('s_mul_i32 s22, s21, 72'); k('s_sub_u32 s22, s20, s22')
    k('s_lshl_b32 s23, s21, 6'); k('v_add_u32 v18, s23, v2'); k('v_mul_u32_u24 v19, 1152, v18')
    k('s_lshl_b32 s24, s22, 4')
    k('buffer_load_dwordx4 v[20:23], v19, s[60:63], s24 offen')
    k('v_lshlrev_b32 v18, 1, v18')
    k('s_lshr_b32 s24, s22, 1'); k('s_lshl_b32 s24, s24, 5'); k('s_and_b32 s25, s22, 1'); k('s_lshl_b32 s25, s25, 1'); k('s_add_u32 s25, s25, s19')
    k('s_lshl_b32 s25, s25, 2'); k('s_add_u32 s24, s24, s25'); k('s_mul_i32 s24, s24, 1152'); k('s_add_u32 s25, s24, %d' % (16 * 1152))
    k('s_waitcnt vmcnt(0)')
    for j in range(8):
        op = 'buffer_store_short_d16_hi' if j & 1 else 'buffer_store_short'
        k('%s v%d, v18, s[56:59], s%d offen offset:%d' % (op, 20 + (j >> 1), 24 + (j >> 2), (j & 3) * 1152))
    k('s_add_u32 s18, s18, 256'); k('s_cmp_lt_u32 s18, 1296'); k('s_cbranch_scc1 %s' % LP)
    stamp(k, 4)
    k('v_and_b32 v12, 31, v2'); k('v_add_u32 v12, s14, v12')
    k('s_mov_b32 s18, 0')
    PL = k.newlabel('poll'); PX = k.newlabel('pollx'); k.label(PL)
    k('buffer_load_ubyte v13, v12, s[52:55], 0 offen sc1')
    k('s_add_u32 s18, s18, 1'); k('s_cmp_gt_u32 s18, %d' % SPIN); k('s_cbranch_scc1 %s' % PX)
    k('s_waitcnt vmcnt(0)')
    k('v_cmp_eq_u32 vcc, 0, v13')
    k('s_cbranch_vccnz %s' % PL)
    k.label(PX)
    stamp(k, 5)
    for t in range(9):
        k('s_add_u32 s14, s15, %d' % (t * 4096))
        k('buffer_load_dwordx4 %s, v8, s[48:51], s14 offen sc1' % vr(18 + 8 * t, 4))
        k('buffer_load_dwordx4 %s, v8, s[48:51], s14 offen offset:16 sc1' % vr(22 + 8 * t, 4))
    k('s_mul_i32 s13, s4, 4096')
    k('v_mul_u32_u24 v10, 192, v3'); k('v_lshl_add_u32 v10, v4, 5, v10'); k('v_add_u32 v10, s13, v10')
    k('v_bfe_u32 v11, v0, 2, 2'); k('v_mul_u32_u24 v11, 192, v11'); k('v_lshl_add_u32 v11, v4, 3, v11')
    k('v_and_b32 v12, 3, v0'); k('v_lshl_add_u32 v11, v12, 5, v11'); k('v_add_u32 v11, s13, v11')
    k('v_lshrrev_b32 v12, 5, v2'); k('v_mul_u32_u24 v12, %d, v12' % (180 * 2048)); k('v_and_b32 v13, 31, v2'); k('v_lshl_add_u32 v12, v13, 4, v12')
    k('s_mul_i32 s18, s10, 720'); k('s_mul_i32 s19, s8, 9'); k('s_add_u32 s18, s18, s19'); k('s_add_u32 s18, s18, 288'); k('s_lshl_b32 s18, s18, 10')
    k('s_waitcnt vmcnt(0)')
    CB = 90
    for g3 in range(3):
        N3 = range(3)
        tl = lambda n: 3 * g3 + n
        U = lambda n: ACC + 16 * tl(n)
        Er = lambda n: 18 + 8 * tl(n)
        C_ = lambda n, i: CB + 7 * n + i
        for n in N3:
            k('v_accvgpr_read_b32 v%d, a%d' % (C_(n, 0), 8 * tl(n) + 4)); k('v_accvgpr_read_b32 v%d, a%d' % (C_(n, 1), 8 * tl(n) + 5))
            k('v_accvgpr_read_b32 v%d, a%d' % (C_(n, 2), 8 * tl(n) + 6)); k('v_accvgpr_read_b32 v%d, a%d' % (C_(n, 3), 8 * tl(n) + 7))
            k('v_accvgpr_read_b32 v%d, a%d' % (C_(n, 6), 80 + tl(n)))
        for j in range(1, 8):
            for n in N3: k('v_fmac_f32 v%d, v%d, v%d' % (Er(n) + j, C_(n, 0), Er(n) + j - 1))
            for n in N3: k('v_fmac_f32_dpp v%d, v%d, v%d %s' % (Er(n) + j, Er(n) + j - 1, C_(n, 1), DPP8))
        for n in N3: k('v_mul_f32 v%d, v%d, v%d' % (C_(n, 4), C_(n, 2), Er(n) + 7))
        for n in N3: k('v_fmac_f32_dpp v%d, v%d, v%d %s' % (C_(n, 4), Er(n) + 7, C_(n, 3), DPP8))
        for n in N3:
            for i in range(4): k('v_accvgpr_read_b32 v%d, a%d' % (C_(n, i), 8 * tl(n) + i))
        for sw in ('v_permlane16_swap_b32', 'v_permlane32_swap_b32'):
            for n in N3: k('v_mov_b32 v%d, v%d' % (C_(n, 5), C_(n, 4)))
            for n in N3: k('%s v%d, v%d' % (sw, C_(n, 4), C_(n, 5)))
            for n in N3: k('v_add_f32 v%d, v%d, v%d' % (C_(n, 4), C_(n, 4), C_(n, 5)))
        for n in N3: k('v_fmac_f32 v%d, v%d, v%d' % (C_(n, 6), C_(n, 2), C_(n, 4)))
        for n in N3: k('v_fmac_f32_dpp v%d, v%d, v%d %s' % (C_(n, 6), C_(n, 4), C_(n, 3), DPP8))
        for j in range(16):
            prev = (lambda n: C_(n, 6)) if j == 0 else (lambda n: U(n) + j - 1)
            for n in N3: k('v_fmac_f32 v%d, v%d, v%d' % (U(n) + j, C_(n, 0), prev(n)))
            for n in N3: k('v_fmac_f32_dpp v%d, v%d, v%d %s' % (U(n) + j, prev(n), C_(n, 1), DPP8))
        for n in N3:
            for j in range(8): k('v_cvt_pk_bf16_f32 v%d, v%d, v%d' % (Er(n) + j, U(n) + 2 * j, U(n) + 2 * j + 1))
        for n in N3:
            k('ds_write_b128 v10, %s' % vr(Er(n), 4)); k('ds_write_b128 v10, %s offset:16' % vr(Er(n) + 4, 4))
            for mm in range(4): k('ds_read_b64_tr_b16 %s, v11 offset:%d' % (vr(U(n) + 2 * mm, 2), 768 * mm))
            k('s_add_u32 s19, s18, %d' % (tl(n) * 1024))
            k('s_waitcnt lgkmcnt(0)')
            for hh in range(2):
                k('buffer_store_dwordx4 %s, v12, s[44:47], s19 offen offset:%d' % (vr(U(n) + 4 * hh, 4), 512 * hh))
    stamp(k, 10)
    if G.STAMP: k('s_waitcnt vmcnt(0)')
    stamp_end(k, 1)


def gen_k2(NS=10, LEAD=3):
    k = K('k2_kernel'); header(k)
    END = k.newlabel('end'); L1 = k.newlabel('glu'); L2 = k.newlabel('join')
    k('s_cmp_ge_u32 s2, 240'); k('s_cbranch_scc1 %s' % END)
    k('s_load_dwordx2 s[32:33], s[0:1], 120')
    k('s_load_dwordx4 s[16:19], s[0:1], 96')
    k('v_lshrrev_b32 v1, 6, v0'); k('v_and_b32 v2, 63, v0'); k('v_readfirstlane_b32 s4, v1')
    stamp(k, 0, real=True); stamp(k, 1)
    k('s_and_b32 s5, s2, 1'); k('s_bfe_u32 s6, s2, 0x20001'); k('s_lshr_b32 s7, s2, 3')
    k('v_lshlrev_b32 v5, 4, v2')
    k('v_lshrrev_b32 v6, 4, v2'); k('v_and_b32 v7, 15, v2'); k('v_lshlrev_b32 v3, 2, v6'); k('v_xor_b32 v7, v7, v3')
    k('s_lshl_b32 s8, s4, 4'); k('v_add_u32 v6, s8, v6'); k('v_mul_u32_u24 v6, 1152, v6'); k('v_lshl_add_u32 v8, v7, 4, v6')
    for i in range(1, 4): k('v_add_u32 v%d, %d, v8' % (8 + i, i * (4 * 1152 - 1024)))
    k('v_lshrrev_b32 v6, 3, v2'); k('v_and_b32 v7, 7, v2'); k('v_and_b32 v3, 2, v6'); k('v_lshlrev_b32 v3, 1, v3'); k('v_xor_b32 v7, v7, v3')
    k('s_lshl_b32 s8, s4, 5'); k('v_add_u32 v6, s8, v6'); k('v_mul_u32_u24 v6, 1152, v6'); k('v_lshl_add_u32 v12, v7, 4, v6')
    k('v_add_u32 v12, 256, v12')
    for i in range(1, 4): k('v_add_u32 v%d, %d, v12' % (12 + i, i * (8 * 1152 - 1024)))
    k('v_bfe_u32 v3, v0, 2, 2')
    k('v_lshrrev_b32 v6, 5, v2'); k('v_lshl_add_u32 v6, v6, 2, v3')
    k('v_bfe_u32 v7, v0, 4, 1'); k('v_lshlrev_b32 v7, 5, v7'); k('v_and_b32 v4, 3, v0'); k('v_lshl_add_u32 v7, v4, 3, v7')
    k('v_lshl_add_u32 v34, v6, 8, v7'); k('v_lshl_add_u32 v35, v6, 7, v7')
    for T in range(4):
        k('v_xor_b32 v4, %d, v3' % T); k('v_lshl_add_u32 v%d, v4, 6, v34' % (16 + T))
        k('v_add_u32 v%d, 0x10000, v%d' % (20 + T, 16 + T)); k('v_add_u32 v%d, 0x20000, v%d' % (24 + T, 16 + T))
    k('v_lshrrev_b32 v3, 1, v3')
    for T in range(2):
        k('v_xor_b32 v4, %d, v3' % T); k('v_lshl_add_u32 v%d, v4, 6, v35' % (28 + T))
        k('v_add_u32 v%d, 0x10000, v%d' % (30 + T, 28 + T)); k('v_add_u32 v%d, 0x20000, v%d' % (32 + T, 28 + T))
    k('s_waitcnt lgkmcnt(0)')
    k('s_cmp_lt_u32 s7, 24'); k('s_cbranch_scc1 %s' % L1)
    k('s_sub_u32 s11, s7, 24'); k('s_lshl_b32 s8, s5, 2'); k('s_add_u32 s8, s8, s6'); k('s_lshl_b32 s8, s8, 1'); k('s_and_b32 s9, s11, 1'); k('s_add_u32 s8, s8, s9')
    k('s_lshr_b32 s9, s11, 1'); k('s_mov_b32 s10, 0'); k('s_mov_b32 s11, 4')
    k('s_add_u32 s20, s32, 0x%x' % WS_CT); k('s_addc_u32 s21, s33, 0')
    for g in range(4): k('s_mov_b32 s%d, %d' % (60 + g, (g * 4 + 3) * 4 * 6144))
    k('s_branch %s' % L2)
    k.label(L1)
    k('s_and_b32 s8, s7, 7'); k('s_lshl_b32 s9, s5, 3'); k('s_add_u32 s8, s8, s9'); k('s_lshr_b32 s9, s7, 3')
    k('s_mov_b32 s10, s6'); k('s_mov_b32 s11, s6')
    k('s_mul_i32 s12, s6, %d' % (1152 * 1152)); k('s_add_u32 s20, s16, s12'); k('s_addc_u32 s21, s17, 0')
    k('s_mov_b32 s60, 0x7f000000')
    for g in range(1, 4):
        k('s_add_u32 s12, s6, %d' % g); k('s_and_b32 s12, s12, 3'); k('s_mul_i32 s12, s12, %d' % (16 * 6144)); k('s_add_u32 s%d, s12, %d' % (60 + g, (g - 1) * 4 * 6144))
    k.label(L2)
    k('s_mul_i32 s12, s9, 384'); k('s_sub_u32 s13, %d, s12' % (1152 * 1152))
    srd(k, 36, 20, 's13', 0, 's12')
    k('s_lshl_b32 s14, s8, 2'); k('s_add_u32 s14, s14, s4')
    k('s_mul_i32 s12, s14, 180'); k('s_mul_i32 s13, s11, 36'); k('s_add_u32 s12, s12, s13'); k('s_lshl_b32 s12, s12, 11')
    srd(k, 40, 32, 73728, WS_H, 's12')
    k('s_lshl_b32 s12, s10, 3'); k('v_add_u32 v6, s12, v2'); k('v_and_b32 v6, 31, v6'); k('v_and_b32 v7, 32, v2'); k('v_or_b32 v6, v6, v7'); k('v_lshlrev_b32 v36, 4, v6')
    k('s_lshl_b32 s28, s4, 12')
    k('s_mul_i32 s15, s8, 3'); k('s_add_u32 s15, s15, s9')
    k('s_mul_i32 s12, s15, %d' % (64 * 6144)); k('s_mul_i32 s13, s4, 6144'); k('s_add_u32 s12, s12, s13')
    srd(k, 44, 32, 61 * 6144, WS_EX, 's12')
    k('s_lshl_b32 s12, s15, 8'); k('s_lshl_b32 s13, s4, 5'); k('s_add_u32 s12, s12, s13')
    srd(k, 48, 32, 160, WS_FL, 's12')
    ACC = 128; WR = 64; NW = 8
    def hr(sg): return ar(4 * sg, 4) if sg < 64 else vr(224 + 4 * (sg - 64), 4)
    S = Sim(k)
    def program():
        S.reset(); o = S.out
        def dma(J):
            so = J * 64 * 1152 if J < 18 else (J - 18) * 128 * 1152
            vb = 8 if J < 18 else 12
            th = [lambda: (o('s_add_u32 m0, s28, %d' % ((J % NS) * 16384)), o('s_mov_b32 s30, %d' % so))]
            for i in range(4):
                th.append(lambda i=i: S.op('vm', ('W', J), 'buffer_load_dwordx4 v%d, s[36:39], s30 offen offset:%d lds' % (vb + i, 1024 * i)))
            return th
        def hld(J):
            th = [lambda: o('s_mov_b32 s31, %d' % (J * 4096))]
            for m in range(4):
                th.append(lambda m=m: S.op('vm', ('H', 4 * J + m), 'buffer_load_dwordx4 %s, v36, s[40:43], s31 offen offset:%d' % (hr(4 * J + m), 1024 * m)))
            return th
        uses = [(0, sg, T) for sg in range(72) for T in range(4)] + [(1, sg, T) for sg in range(72) for T in range(2)]
        NU = len(uses); AHEAD = NW - 2
        slab_of = lambda u: (uses[u][1] >> 2) if uses[u][0] == 0 else 18 + (uses[u][1] >> 3)
        last_use = {}
        for u in range(NU): last_use[slab_of(u)] = u
        def rd(u):
            p, sg, T = uses[u]
            slot = slab_of(u) % NS
            if p == 0:
                base = 16 + 4 * (slot // 4) + T; off = (slot % 4) * 16384 + (32 * ((sg >> 1) & 1) + 8 * (sg & 1)) * 256; hs = 4096
            else:
                base = 28 + 2 * (slot // 4) + T; off = (slot % 4) * 16384 + (32 * ((sg >> 1) & 3) + 8 * (sg & 1)) * 128; hs = 2048
            r = WR + 4 * (u % NW)
            return [lambda h=h: S.op('lg', ('R', u), 'ds_read_b64_tr_b16 %s, v%d offset:%d' % (vr(r + 2 * h, 2), base, off + hs * h)) for h in range(2)]
        def exst(tiles, p):
            th = []
            for g in range(4):
                for T in tiles:
                    if T == 4: th.append(lambda g=g: o('s_add_u32 s34, s%d, 4096' % (60 + g)))
                    so = 's%d' % (60 + g) if T < 4 else 's34'
                    th.append(lambda g=g, T=T, so=so: S.op('vm', ('EX', p), 'buffer_store_dwordx4 %s, v5, s[44:47], %s offen offset:%d sc1' % (vr(ACC + 16 * T + 4 * g, 4), so, 1024 * (T & 3))))
            return th
        def flag(p):
            S.wait(('fl', p), vm=[('EX', p)])
            S.op('vm', ('FL', p), 'buffer_store_dword v37, v38, s[48:51], 0 offen offset:%d sc1' % (128 * p))
        o('v_mov_b32 v37, 1'); o('s_lshl_b32 s12, s11, 2'); o('v_mov_b32 v38, s12')
        for J in range(LEAD):
            for t in dma(J) + hld(J): t()
        nextW = LEAD
        barriered = set()
        def barrier_for(J):
            S.wait(('b', J), vm=[('W', J)]); o('s_barrier'); barriered.add(J)
        stamp(k, 2, emit=S.emit)
        barrier_for(0)
        stamp(k, 3, emit=S.emit)
        for u in range(AHEAD):
            for t in rd(u): t()
        pend = []; epi = []
        for u in range(NU):
            p, sg, T = uses[u]
            ua = u + AHEAD
            if ua < NU and slab_of(ua) not in barriered:
                Jb = slab_of(ua)
                barrier_for(Jb)
                n = 0
                while nextW < 27 and (nextW - NS < 0 or last_use[nextW - NS] < u) and nextW <= Jb + LEAD - 1 + (0 if nextW < 18 else 2) and n < 2:
                    pend += dma(nextW)
                    if nextW < 18: pend += hld(nextW)
                    nextW += 1; n += 1
            vm = [('H', sg)] if (p == 0 and T == 0) else None
            S.wait(('u', u), vm=vm, lg=[('R', u)])
            tile = T if p == 0 else 4 + T
            a = vr(ACC + 16 * tile, 16)
            o('v_mfma_f32_32x32x16_bf16 %s, %s, %s, %s' % (a, hr(sg), vr(WR + 4 * (u % NW), 4), '0' if sg == 0 else a))
            if ua < NU:
                for t in rd(ua): t()
            if pend: pend.pop(0)()
            elif epi and u >= 288 + 2: epi.pop(0)()
            if u == 287:
                epi += exst(range(4), 0); stamp(k, 4, emit=S.emit)
            if u == 288 + 80: flag(0)
        assert not pend and not epi and nextW == 27
        stamp(k, 5, emit=S.emit)
        for t in exst((4, 5), 1): t()
        flag(1)
    S.emit = False; program()
    S.emit = True; program()
    stamp(k, 6)
    FIN = k.newlabel('fin')
    k('s_cmp_eq_u32 s11, 4'); k('s_cbranch_scc1 %s' % FIN)
    srd(k, 52, 32, SZ_R, WS_R); srd(k, 56, 18, 2048 * 576 * 4)
    k('s_lshr_b32 s12, s14, 1'); k('s_lshl_b32 s12, s12, 6'); k('s_and_b32 s13, s10, 1'); k('s_lshl_b32 s13, s13, 5'); k('s_add_u32 s12, s12, s13')
    k('s_and_b32 s13, s14, 1'); k('s_lshl_b32 s13, s13, 3'); k('s_add_u32 s12, s12, s13'); k('s_lshr_b32 s13, s10, 1'); k('s_lshl_b32 s13, s13, 2'); k('s_add_u32 s12, s12, s13')
    k('s_mul_i32 s12, s12, 2304'); k('s_mul_i32 s13, s9, 768'); k('s_add_u32 s12, s12, s13'); k('s_add_u32 s13, s12, 4608')
    k('v_lshrrev_b32 v6, 5, v2'); k('v_mul_u32_u24 v6, %d, v6' % (16 * 2304)); k('v_and_b32 v7, 31, v2'); k('v_lshl_add_u32 v6, v7, 2, v6')
    RR = 8
    for T in range(6):
        for r in range(4):
            k('buffer_load_dword v%d, v6, s[52:55], s%d offen offset:%d' % (RR + 4 * T + r, 12 + (r >> 1), (r & 1) * 2304 + 128 * T))
    k('v_and_b32 v32, 7, v2'); k('v_min_u32 v32, 4, v32'); k('v_lshlrev_b32 v32, 2, v32'); k('v_bfe_u32 v33, v2, 3, 1'); k('v_lshl_add_u32 v32, v33, 7, v32')
    k('s_mov_b32 s18, 0')
    PL = k.newlabel('poll'); PX = k.newlabel('pollx'); k.label(PL)
    k('buffer_load_dword v33, v32, s[48:51], 0 offen sc1')
    k('s_add_u32 s18, s18, 1'); k('s_cmp_gt_u32 s18, %d' % SPIN); k('s_cbranch_scc1 %s' % PX)
    k('s_waitcnt vmcnt(0)')
    k('v_cmp_eq_u32 vcc, 0, v33')
    k('s_cbranch_vccnz %s' % PL)
    k.label(PX)
    stamp(k, 7)
    k('s_mul_i32 s18, s10, %d' % (16 * 6144))
    def pr(sl, T): return (ACC + 16 * T + 4 * (sl + 1)) if sl < 3 else 64 + 4 * T
    for T in range(6):
        for sl in range(4):
            k('s_add_u32 s19, s18, %d' % (sl * 4 * 6144 + (T >> 2) * 4096))
            k('buffer_load_dwordx4 %s, v5, s[44:47], s19 offen offset:%d sc1' % (vr(pr(sl, T), 4), 1024 * (T & 3)))
    for T in range(6):
        k('s_waitcnt vmcnt(%d)' % (4 * (5 - T) + 4 * T))
        a = ACC + 16 * T
        for h in (0, 2):
            P = lambda r: 'v[%d:%d]' % (r + h, r + h + 1)
            k('v_pk_add_f32 %s, %s, %s' % (P(a), P(a), P(RR + 4 * T)))
            k('v_pk_add_f32 %s, %s, %s' % (P(a + 4), P(a + 4), P(a + 8)))
            k('v_pk_add_f32 %s, %s, %s' % (P(a + 12), P(a + 12), P(64 + 4 * T)))
            k('v_pk_add_f32 %s, %s, %s' % (P(a), P(a), P(a + 4)))
            k('v_pk_add_f32 %s, %s, %s' % (P(a), P(a), P(a + 12)))
        for r in range(4):
            k('buffer_store_dword v%d, v6, s[56:59], s%d offen offset:%d' % (a + r, 12 + (r >> 1), (r & 1) * 2304 + 128 * T))
    k.label(FIN)
    stamp(k, 10)
    if G.STAMP: k('s_waitcnt vmcnt(0)')
    stamp_end(k, 2)
    k.label(END)
    k('s_endpgm')
    return k, desc(k.name, 512, 256), (240, 256, 160 * 1024)

if __name__ == '__main__':
    if '-t' in sys.argv: G.STAMP = True
    ks = [gen_k0(), gen_k1(), gen_k2()]
    build(ks, sys.argv[1], verbose='-v' in sys.argv)
```
